```python
import torch

def _softmax(x, axis=-1):
    return torch.softmax(x, dim=axis)

def _gelu(x):
    return torch.nn.functional.gelu(x, approximate='tanh')

def _silu(x):
    return torch.nn.functional.silu(x)

def _sigmoid(x):
    return torch.sigmoid(x)

def _layernorm(x, axis=-1, eps=1e-05):
    m = x.mean(dim=axis, keepdim=True)
    v = x.var(dim=axis, keepdim=True, unbiased=False)
    return (x - m) / torch.sqrt(v + eps)

def _scatter_add(tgt, idx, src, axis=0):
    return tgt.clone().index_add_(axis, idx, src)

def _segment_sum(src, seg, n):
    out = torch.zeros((n,) + src.shape[1:], dtype=src.dtype)
    return out.index_add_(0, seg, src)

def _pad(x, pw):
    flat = tuple((v for pair in reversed(pw) for v in pair))
    return torch.nn.functional.pad(x, flat)
kernel_name = 'sequential_preLN__compressed_kv_cla__mixer_gmlp__prompt'

def setup_inputs():

    _w = lambda a: (lambda t: t.to(torch.bfloat16) if t.is_floating_point() else t)(torch.as_tensor(a))

    def _A_setup():
        B, H, Sq, Sk, D, M = (1, 32, 2048, 2048, 128, 512)
        Dc = 4 * D
        return {'x': _w((lambda *s: torch.randn(*s, dtype=torch.bfloat16) * 0.05)(B, Sq, M)), 'c_kv': _w((lambda *s: torch.randn(*s, dtype=torch.bfloat16) * 0.4)(B, Sk, Dc)), 'w_q': _w((lambda *s: torch.randn(*s, dtype=torch.bfloat16) * 3.2)(M, H, D) * M ** (-0.5)), 'w_uk': _w((lambda *s: torch.randn(*s, dtype=torch.bfloat16) * 3.2)(Dc, H, D) * Dc ** (-0.5)), 'w_uv': _w((lambda *s: torch.randn(*s, dtype=torch.bfloat16) * 0.4)(Dc, H, D) * Dc ** (-0.5)), 'w_o': _w((lambda *s: torch.randn(*s, dtype=torch.bfloat16) * 0.4)(H, D, M) * (H * D) ** (-0.5))}
    _A_in = _A_setup()

    def _B_setup():
        B, S, D, F = (1, 2048, 512, 1792)
        Fh = F // 2
        return {'x': _w((lambda *s: torch.randn(*s, dtype=torch.bfloat16) * 0.05)(B, S, D)), 'w_in': _w((lambda *s: torch.randn(*s, dtype=torch.bfloat16) * 0.4)(D, 2 * Fh)), 'w_sp': _w(0.01 * (lambda *s: torch.randn(*s, dtype=torch.bfloat16) * 0.4)(S, S)), 'b_sp': _w(1.0 + 0.01 * (lambda *s: torch.randn(*s, dtype=torch.bfloat16) * 0.05)(S)), 'w_out': _w((lambda *s: torch.randn(*s, dtype=torch.bfloat16) * 0.05)(Fh, D))}
    _B_in = _B_setup()
    return {'A_x': _A_in['x'], 'A_c_kv': _A_in['c_kv'], 'A_w_q': _A_in['w_q'], 'A_w_uk': _A_in['w_uk'], 'A_w_uv': _A_in['w_uv'], 'A_w_o': _A_in['w_o'], 'B_x': _B_in['x'], 'B_w_in': _B_in['w_in'], 'B_w_sp': _B_in['w_sp'], 'B_b_sp': _B_in['b_sp'], 'B_w_out': _B_in['w_out']}

def reference(A_x, A_c_kv, A_w_q, A_w_uk, A_w_uv, A_w_o, B_x, B_w_in, B_w_sp, B_b_sp, B_w_out):

    def _A_ref(x, c_kv, w_q, w_uk, w_uv, w_o):
        B, Sq, M = (x.shape[0], x.shape[1], x.shape[2])
        Sk = c_kv.shape[1]
        H, D = (w_q.shape[1], w_q.shape[2])
        q = torch.einsum('bqm,mhd->bhqd', x, w_q)
        k = torch.einsum('bkc,chd->bhkd', c_kv, w_uk)
        v = torch.einsum('bkc,chd->bhkd', c_kv, w_uv)
        scores = torch.einsum('bhqd,bhkd->bhqk', q, k) * D ** (-0.5)
        off = Sk - Sq
        qi = torch.arange(Sq)[:, None]
        kj = torch.arange(Sk)[None, :]
        cmask = kj <= qi + off
        scores = torch.where(cmask[None, None], scores, -1000000000.0)
        p = _softmax(scores, axis=-1)
        ctx = torch.einsum('bhqk,bhkd->bhqd', p, v)
        return torch.einsum('bhqd,hdm->bqm', ctx, w_o)

    def _B_ref(x, w_in, w_sp, b_sp, w_out):
        B, S, D = x.shape
        F = w_in.shape[-1]
        Fh = F // 2
        z = _gelu(torch.einsum('bsd,df->bsf', x, w_in))
        z1 = z[..., :Fh].clone()
        z2 = _layernorm(z[..., Fh:], axis=-1)
        g = torch.einsum('ts,bsf->btf', w_sp, z2) + b_sp[None, :, None]
        return torch.einsum('bsf,fd->bsd', z1 * g, w_out)
    x = A_x
    h = x + _A_ref(_layernorm(x, axis=-1), A_c_kv, A_w_q, A_w_uk, A_w_uv, A_w_o)
    h2 = h + _B_ref(_layernorm(h, axis=-1), B_w_in, B_w_sp, B_b_sp, B_w_out)
    return h2
```

```python
import re, sys

def vr(b, n=1, f='v'):
    return f"{f}{b}" if n == 1 else f"{f}[{b}:{b+n-1}]"
def v(b, n=1): return vr(b, n, 'v')
def a(b, n=1): return vr(b, n, 'a')
def s(b, n=1): return vr(b, n, 's')

class R:
    def __init__(self, f, b, n=1): self.f, self.b, self.n = f, b, n
    def __str__(self): return vr(self.b, self.n, self.f)
    __repr__ = __str__
    def __format__(self, spec): return str(self)
    def __getitem__(self, i):
        if isinstance(i, slice):
            st = i.start or 0; en = self.n if i.stop is None else i.stop
            assert 0 <= st < en <= self.n, (self, i)
            return R(self.f, self.b + st, en - st)
        assert 0 <= i < self.n, (self, i)
        return R(self.f, self.b + i, 1)
    def sub(self, st, n): return self[st:st+n]

class Alloc:
    def __init__(self, f, lo, hi): self.f, self.lo, self.hi, self.p = f, lo, hi, lo
    def __call__(self, n=1, align=None):
        al = align or (1 if n == 1 else 2 if (self.f != 's' or n == 2) else 4)
        self.p = (self.p + al - 1) // al * al
        r = R(self.f, self.p, n); self.p += n
        assert self.p <= self.hi, f"out of {self.f} regs ({self.p} > {self.hi})"
        return r

class Kern:
    def __init__(self, name, vgpr=512, acc=256, sgpr=102):
        self.name, self.vgpr, self.acc, self.sgpr = name, vgpr, acc, sgpr
        self.L = []
        self.nlab = 0
    def __call__(self, *lines):
        for t in lines:
            if isinstance(t, (list, tuple)): self(*t); continue
            for l in t.split("\n"):
                l = l.strip()
                if l: self.L.append(l)
    def lab(self, base="L"):
        self.nlab += 1
        return f"L{base}{self.nlab}" if len(self.name) > 20 else f"{self.name}_{base}{self.nlab}"
    def label(self, n): self.L.append(n + ":")
    def text(self):
        o = [f".globl {self.name}", ".p2align 8", f".type {self.name},@function", f"{self.name}:"]
        for l in self.L:
            o.append(l if l.endswith(":") or l.startswith(".") else " " + l)
        return "\n".join(o) + "\n"
    def desc(self):
        return f""".amdhsa_kernel {self.name}
  .amdhsa_next_free_vgpr {self.vgpr}
  .amdhsa_next_free_sgpr {self.sgpr}
  .amdhsa_accum_offset {self.acc}
  .amdhsa_group_segment_fixed_size 0
  .amdhsa_kernarg_size 112
  .amdhsa_user_sgpr_count 2
  .amdhsa_user_sgpr_kernarg_segment_ptr 1
  .amdhsa_system_sgpr_workgroup_id_x 1
.end_amdhsa_kernel
"""

def is_valu(t):
    return t.startswith("v_") and not t.startswith("v_mfma")

def weave(mf, slots):
    out = []
    for i, m in enumerate(mf):
        out.append(m)
        f = slots[i] if (isinstance(slots, list) and i < len(slots)) else (slots.get(i, []) if isinstance(slots, dict) else [])
        out.extend(f)
    return out

_reg = re.compile(r"^(-|\|)?(abs\()?([vas])(?:(\d+)|\[(\d+):(\d+)\])\)?\|?$")
def regs_of(tok):
    tok = tok.strip()
    if tok in ("vcc", "vcc_lo", "vcc_hi"): return {("s", "vcc")}
    if tok in ("exec", "exec_lo", "exec_hi"): return {("s", "exec")}
    if tok == "m0": return {("s", "m0")}
    m = _reg.match(tok)
    if not m: return set()
    f = m.group(3)
    if m.group(4) is not None: return {(f, int(m.group(4)))}
    return {(f, i) for i in range(int(m.group(5)), int(m.group(6)) + 1)}

TRANS = ("v_exp_f32", "v_log_f32", "v_rcp_f32", "v_rsq_f32", "v_sqrt_f32", "v_sin_f32", "v_cos_f32")
class I:
    def __init__(self, text):
        self.t = text
        body = text.split(";")[0].strip()
        p = body.split(None, 1)
        self.op = p[0]
        rest = p[1] if len(p) > 1 else ""
        toks = [x.strip() for x in rest.split(",")] if rest else []
        mods = ""
        if toks:
            last = toks[-1].split(None, 1)
            toks[-1] = last[0]; mods = last[1] if len(last) > 1 else ""
        self.toks, self.mods = toks, mods
        op = self.op
        self.w = set(); self.r = set()
        self.kind = "other"
        self.passes = 0
        R_ = [regs_of(x) for x in toks]
        U = lambda l: set().union(*l) if l else set()
        if op.startswith("v_mfma"):
            self.kind = "mfma"; self.passes = 8 if "32x32x16" in op else 4 if "16x16x32" in op else None
            assert self.passes, op
            self.w = R_[0]; self.ab = R_[1] | R_[2]; self.c = R_[3]; self.r = self.ab | self.c
        elif op.startswith("ds_read") or op.startswith("ds_bpermute") or op.startswith("ds_swizzle") or op.startswith("ds_permute"):
            self.kind = "ds"; self.w = R_[0]; self.r = U(R_[1:])
        elif op.startswith("ds_write") or op.startswith("ds_add") :
            self.kind = "ds"; self.r = U(R_)
        elif op.startswith("buffer_load") or op.startswith("global_load"):
            self.kind = "vmem"
            if " lds" in " " + mods or "_lds_" in op:
                self.r = U(R_) | {("s", "m0")}; self.lds = True
            else:
                self.w = R_[0]; self.r = U(R_[1:])
        elif op.startswith("buffer_store") or op.startswith("global_store"):
            self.kind = "vmem"; self.r = U(R_)
            self.data = R_[0] if op.startswith("buffer") else R_[1]
            self.wide = op.endswith("x4") or op.endswith("x3")
        elif op.startswith("buffer_atomic") or op.startswith("global_atomic"):
            self.kind = "vmem"; self.r = U(R_)
            if "sc0" in mods: self.w = R_[0]
        elif op.startswith("buffer_inv") or op.startswith("buffer_wbl2"):
            self.kind = "vmem"
        elif op.startswith("v_"):
            self.kind = "valu"
            if op.startswith("v_cmp"):
                self.w = R_[0]; self.r = U(R_[1:])
                if op.startswith("v_cmpx"): self.w = self.w | {("s", "exec")}
            elif op.startswith("v_permlane") and "swap" in op:
                self.w = R_[0] | R_[1]; self.r = R_[0] | R_[1]
            elif re.match(r"v_(add|sub|subrev)_co_u32", op):
                self.w = R_[0] | R_[1]; self.r = U(R_[2:])
            elif re.match(r"v_(addc|subb)_co_u32", op):
                self.w = R_[0] | R_[1]; self.r = U(R_[2:])
            elif op == "v_nop": pass
            elif op.startswith("v_swap"):
                self.w = R_[0] | R_[1]; self.r = R_[0] | R_[1]
            else:
                self.w = R_[0]; self.r = U(R_[1:])
                if op.startswith("v_fmac") or op.startswith("v_writelane") or op.startswith("v_dot2c") or "dpp" in op or "row_" in mods or "quad_perm" in mods: self.r = self.r | R_[0]
            self.dpp = ("row_" in mods or "quad_perm" in mods or "wave_" in mods)
        elif op.startswith("s_load") or op in ("s_memtime", "s_memrealtime") or op.startswith("s_buffer_load"):
            self.kind = "smem"; self.w = R_[0]; self.r = U(R_[1:])
        elif op == "s_waitcnt": self.kind = "wait"
        elif op == "s_nop": self.kind = "nop"
        elif op.startswith("s_cbranch") or op == "s_branch": self.kind = "branch"
        elif op in ("s_endpgm",): self.kind = "end"
        elif op in ("s_barrier", "s_sleep", "s_setprio"): self.kind = "misc"
        elif op.startswith("s_cmp") or op.startswith("s_bitcmp"):
            self.kind = "salu"; self.r = U(R_)
        elif op.startswith("s_"):
            self.kind = "salu"; self.w = R_[0] if R_ else set(); self.r = U(R_[1:])
            if "saveexec" in op: self.w = self.w | {("s", "exec")}
            if op in ("s_setpc_b64",): self.w = set(); self.r = U(R_); self.kind = "setpc"
            if op in ("s_swappc_b64",): self.kind = "setpc"
        else:
            raise ValueError("unknown op " + text)
    def states(self):
        if self.kind == "nop": return int(self.toks[0], 0) + 1
        return 1

def need(p, c):
    n = 0
    vg = lambda S: {x for x in S if x[0] in "va"}
    sg = lambda S: {x for x in S if x[0] == "s"}
    if p.kind == "valu":
        if c.kind == "mfma" and vg(p.w) & c.r: n = max(n, 2)
        if c.kind == "mfma" and ("s", "exec") in p.w: n = max(n, 4)
        if c.kind == "valu":
            if p.op.split("_e")[0] in TRANS and (p.w & c.r) and c.op.split("_e")[0] not in TRANS: n = max(n, 1)
            if sg(p.w) & c.r:
                n = max(n, 4 if c.op.startswith(("v_readlane", "v_writelane")) else 2)
            if c.op.startswith("v_cndmask") and len(c.toks) == 3 and ("s", "vcc") in p.w: n = max(n, 2)
            if c.op.startswith(("v_readlane", "v_readfirstlane")) and vg(p.w) & c.r: n = max(n, 1)
            if c.op.startswith("v_permlane") and vg(p.w) & c.r: n = max(n, 2)
            if getattr(c, "dpp", False) and vg(p.w) & c.r: n = max(n, 2)
            if getattr(c, "dpp", False) and ("s", "exec") in p.w: n = max(n, 5)
            if ("s", "exec") in p.w and c.op.startswith(("v_readlane", "v_readfirstlane", "v_writelane", "v_permlane")): n = max(n, 4)
            if ("op_sel" in p.mods or "dst_sel" in p.mods) and (p.w & (c.r | c.w)): n = max(n, 1)
        if c.kind == "vmem" and sg(p.w) & c.r: n = max(n, 5)
    if p.kind == "salu" and ("s", "m0") in p.w and c.kind == "vmem" and ("s", "m0") in c.r: n = max(n, 1)
    if p.kind == "vmem" and getattr(p, "wide", False) and c.kind in ("valu", "mfma", "ds", "vmem") and p.data & c.w:
        n = max(n, 2 if c.kind == "valu" else 1)
    if p.kind == "mfma":
        far = {4: 8, 8: 12}[p.passes]
        if c.kind == "mfma":
            if p.w & c.ab: n = max(n, far)
            if p.w & c.c and not (p.w == c.c and p.passes == c.passes): n = max(n, {4: 6, 8: 10}[p.passes])
            if p.w & c.w and not (p.w == c.w and p.passes == c.passes) : n = max(n, {4: 6, 8: 10}[p.passes])
        elif c.kind in ("valu", "ds", "vmem"):
            if p.w & (c.r | c.w): n = max(n, far)
            if c.kind == "valu" and p.c & c.w: n = max(n, {4: 3, 8: 7}[p.passes])
    return n

def check(k, verbose=True):
    ins = []; labels = {}
    for l in k.L:
        if l.endswith(":"): labels[l[:-1]] = len(ins)
        elif l.startswith(".") or l.startswith(";"): continue
        else: ins.append(I(l))
    n = len(ins)
    succ = [[] for _ in range(n)]
    for i, x in enumerate(ins):
        if x.kind == "end": continue
        if x.kind == "setpc":
            for t in re.findall(r"->(\S+)", x.t): succ[i].append(labels[t])
            continue
        if x.kind == "branch":
            succ[i].append(labels[x.toks[0]])
            if x.op == "s_branch": continue
        if i + 1 < n: succ[i].append(i + 1)
    errs = []
    for i, p in enumerate(ins):
        if p.kind not in ("valu", "mfma", "salu", "vmem"): continue
        if p.kind == "salu" and ("s", "m0") not in p.w: continue
        if p.kind == "vmem" and not getattr(p, "wide", False): continue
        lim = 12 if p.kind == "mfma" else 5
        st = [(j, 0) for j in succ[i]]; seen = set()
        while st:
            j, d = st.pop()
            if d >= lim or (j, d) in seen or j >= n: continue
            seen.add((j, d))
            c = ins[j]
            q = need(p, c)
            if q > d: errs.append(f"HAZARD need {q} have {d}: [{i}] {p.t}  ->  [{j}] {c.t}")
            for t in succ[j]: st.append((t, d + c.states()))
    start = (0, (), ())
    st = [start]; seen = {start}; werr = set(); steps = 0
    while st:
        i, lg, vm = st.pop()
        while True:
            steps += 1
            if steps > 6000000: errs.append("waitcnt walk too long"); st = []; break
            x = ins[i]
            touch = x.r | x.w
            if touch:
                for (src, w) in lg + vm:
                    if w & touch and (src, i) not in werr:
                        y = ins[src]
                        if not (w & x.r) and x.kind == y.kind and x.kind in ("ds", "vmem"): continue
                        werr.add((src, i)); errs.append(f"WAITCNT: [{src}] {y.t}  ->  [{i}] {x.t}")
            if x.kind == "wait":
                m = re.search(r"vmcnt\((\d+)\)", x.t)
                if m:
                    c = int(m.group(1)); vm = vm[len(vm) - c:] if c < len(vm) and c > 0 else (() if c == 0 else vm)
                m = re.search(r"lgkmcnt\((\d+)\)", x.t)
                if m:
                    c = int(m.group(1))
                    if c == 0: lg = ()
                    elif any(ins[q].kind == "smem" for q, _ in lg): pass
                    elif c < len(lg): lg = lg[len(lg) - c:]
            elif x.kind in ("ds", "smem"):
                lg = (lg + ((i, frozenset(x.w)),))
                if len(lg) > 40: lg = lg[-40:]
            elif x.kind == "vmem":
                vm = (vm + ((i, frozenset(x.w)),))
                if len(vm) > 70: vm = vm[-70:]
            while lg and not lg[0][1]: lg = lg[1:]
            while vm and not vm[0][1]: vm = vm[1:]
            sc = succ[i]
            if len(sc) == 1 and sc[0] == i + 1 and (i + 1) not in labels.values():
                i += 1; continue
            for t in sc:
                z = (t, lg, vm)
                if z not in seen: seen.add(z); st.append(z)
            break
    if verbose:
        for e in errs[:40]: print(k.name, e)
        print(f"{k.name}: {n} instrs, {len(errs)} problems")
    return errs

def write_file(path, header_comment, launches, kerns, tail=""):
    o = [header_comment.rstrip("\n")]
    for (name, grid, block, lds) in launches:
        o.append(f"; @launch kernel={name} grid=({grid},1,1) block=({block},1,1) lds={lds}")
    o.append('.amdgcn_target "amdgcn-amd-amdhsa--gfx950"\n.text')
    for k in kerns: o.append(k.text())
    if tail: o.append(tail)
    o.append('.section .rodata,"a"')
    for k in kerns: o.append(".p2align 6\n" + k.desc())
    open(path, "w").write("\n".join(o))
```

```python
from asmlib import *
WS_XN   = 0x0000000
WS_KV   = 0x0400000
WS_CTX  = 0x2400000
WS_H    = 0x3400000
WS_Z1   = 0x3800000
WS_Z2   = 0x3C00000
WS_Y    = 0x4000000
WS_FLAG = 0x4400000
WS_STAMP= 0xF000000
WS_SIZE = 0x10000000
ARG = dict(x=0, ckv=8, wq=16, wuk=24, wuv=32, wo=40, win=56, wsp=64, bsp=72, wout=80, out=88, dbg=96, ws=104)
SZ = dict(x=2048*512*2, ckv=2048*512*2, wq=512*4096*2, wuk=512*4096*2, wuv=512*4096*2, wo=4096*512*2,
          win=512*1792*2, wsp=2048*2048*2, bsp=2048*2, wout=896*512*2, out=2048*512*2, dbg=256, ws=WS_SIZE)
M16 = "v_mfma_f32_16x16x32_bf16"
M32 = "v_mfma_f32_32x32x16_bf16"

def load_srds(k, srds):
    for n, r in srds.items():
        k(f"s_load_dwordx2 {r[0:2]}, s[0:1], {ARG[n]}")
    for n, r in srds.items():
        k(f"s_mov_b32 {r[2]}, {SZ[n]}", f"s_mov_b32 {r[3]}, 0x20000")
    k("s_waitcnt lgkmcnt(0)")

def f2u(x):
    import struct
    return "0x%08x" % struct.unpack("<I", struct.pack("<f", x))[0]

class Slots:
    def __init__(self, n): self.n = n; self.s = [[] for _ in range(n)]
    def put(self, i, *ins):
        for x in ins:
            if isinstance(x, (list, tuple)): self.put(i, *x)
            else: self.s[i].append(x)
    def spread(self, ins, lo, hi):
        m = len(ins)
        for q, x in enumerate(ins):
            self.put(lo + (q * (hi - lo)) // m, x)
    def weave(self, mf, sort=True):
        assert len(mf) == self.n
        out = []
        for i, m in enumerate(mf):
            out.append(m)
            f = self.s[i]
            if sort: f = [x for x in f if not is_valu(x)] + [x for x in f if is_valu(x)]
            out.extend(f)
        return out

class Diag:
    def __init__(self, k, kidx, on=True): self.k, self.kidx, self.on, self.n = k, kidx, on, 0
    def stamp(self):
        if not self.on: return []
        r = 84 + 2*self.n; self.n += 1; assert self.n <= 8
        return [f"s_memrealtime s[{r}:{r+1}]", "s_waitcnt lgkmcnt(0)"]
    def flush(self):
        if not self.on: return
        k = self.k
        k(self.stamp())
        k("s_load_dwordx2 s[76:77], s[0:1], 104", "s_mov_b32 s78, 0x10000000", "s_mov_b32 s79, 0x20000", "s_waitcnt lgkmcnt(0)")
        k(f"s_lshl_b32 s80, s2, 6", f"s_add_u32 s80, s80, {WS_STAMP + self.kidx*16384}")
        lab = k.lab("dg")
        k("v_cmp_eq_u32 vcc, 0, v0", "s_and_saveexec_b64 s[82:83], vcc", f"s_cbranch_execz {lab}")
        for q in range(self.n):
            k(f"v_mov_b32 v1, s{84+2*q}", f"buffer_store_dword v1, v0, s[76:79], s80 offen offset:{4*q}")
        k.label(lab)

class VmQ:
    def __init__(self): self.q = []
    def issue(self, tag, n=1): self.q += [tag] * n
    def need(self, *tags):
        last = -1
        for i, t in enumerate(self.q):
            if t in tags: last = i
        n = len(self.q) - 1 - last
        self.q = self.q[last+1:]
        assert n <= 63
        return n

def cost(x):
    op = x.split()[0]
    if op in TRANS: return 8
    if op == "s_nop": return 4 * (int(x.split()[1]) + 1)
    return 4

class Sched:
    def __init__(self, mf, budget=24):
        self.mf = mf; self.n = len(mf); self.b = budget
        self.pre = [[] for _ in mf]
        self.val = [[] for _ in mf]
        self.post = [[] for _ in mf]
        self.tail = []
    def used(self, i): return sum(cost(x) for x in self.pre[i] + self.val[i] + self.post[i])
    def fix(self, i, *ins, where="pre"):
        for x in ins:
            if isinstance(x, (list, tuple)): self.fix(i, *x, where=where)
            else: getattr(self, where)[i].append(x)
    def scatter(self, items, lo, hi, where="pre", mingap=1):
        m = len(items); prev = lo - mingap
        for q, x in enumerate(items):
            i = max(lo + (q * (hi - lo)) // m, prev + mingap)
            i = min(i, self.n - 1)
            self.fix(i, x, where=where); prev = i
    def flow(self, items, lo=0, hi=None):
        hi = self.n if hi is None else hi
        tot = sum(cost(x) for x, _ in items)
        free = [max(0, self.b - self.used(i)) for i in range(lo, hi)]
        F = sum(free)
        if tot <= F: cap = [f * tot / F for f in free]
        else: cap = [f + (tot - F) / (hi - lo) for f in free]
        q = 0; credit = 0.0
        for i in range(lo, hi):
            credit += cap[i - lo]
            room = self.b - self.used(i)
            while q < len(items):
                x, e = items[q]; c = cost(x)
                if e > i: break
                if credit < c * 0.5: break
                if tot <= F and c > room and credit < c + 8: break
                self.val[i].append(x); credit -= c; room -= c; q += 1
        while q < len(items):
            self.val[hi - 1].append(items[q][0]); q += 1
    def out(self):
        o = []
        for i, m in enumerate(self.mf):
            o.append(m); o += self.pre[i] + self.val[i] + self.post[i]
        return o
    def est(self, per=32):
        return sum(max(per, 8 + self.used(i)) for i in range(self.n))
WS_STH = WS_FLAG + 0x10000
WS_STZ = WS_FLAG + 0x40000
```

```python
from common import *
import math
QSCALE = math.log2(math.e) / math.sqrt(128.0)

def emit_p1(k, S, V, diag=None):
    ckv, wuk, wuv, xs, ws = S(4), S(4), S(4), S(4), S(4)
    load_srds(k, dict(ckv=ckv, wuk=wuk, wuv=wuv, x=xs, ws=ws))
    sh, sj, sw, sC, sW, sm0c, sm0w, st0, st1 = [S() for _ in range(9)]
    lane, wv, t0, t1, t2 = V(), V(), V(), V(), V()
    k(f"v_and_b32 {lane}, 63, v0", f"v_lshrrev_b32 {wv}, 6, v0",
      f"s_and_b32 {sh}, s2, 31", f"s_lshr_b32 {sj}, s2, 5",
      f"v_readfirstlane_b32 {sw}, {wv}")
    vC = [V() for _ in range(8)]
    k(f"v_lshrrev_b32 {t0}, 3, {lane}",
      f"v_lshrrev_b32 {t1}, 4, {lane}",
      f"v_xor_b32 {t1}, {t1}, {lane}", f"v_and_b32 {t1}, 7, {t1}", f"v_lshlrev_b32 {t1}, 4, {t1}",
      f"v_lshl_add_u32 {t0}, {t0}, 10, {t1}",
      f"v_lshl_add_u32 {t0}, {wv}, 16, {t0}",
      f"v_xor_b32 {t1}, 64, {t0}")
    for i in range(8):
        ip = [0, 2, 1, 3, 4, 6, 5, 7][i]
        k(f"v_add_u32 {vC[i]}, {8192*ip - 1024*(i%4)}, {t1 if i & 1 else t0}")
    vW = [V() for _ in range(4)]
    k(f"v_bfe_u32 {t0}, {lane}, 2, 2", f"v_lshlrev_b32 {t0}, 13, {t0}",
      f"v_lshrrev_b32 {t1}, 4, {lane}", f"v_lshl_add_u32 {t0}, {t1}, 6, {t0}",
      f"v_and_b32 {t1}, 1, {lane}", f"v_lshl_add_u32 {t0}, {t1}, 5, {t0}",
      f"v_bfe_u32 {t1}, {lane}, 1, 1", f"v_lshl_add_u32 {t0}, {t1}, 4, {t0}",
      f"v_lshl_add_u32 {t0}, {wv}, 17, {t0}",
      f"v_xor_b32 {t1}, 16, {t0}")
    for i in range(4):
        k(f"v_add_u32 {vW[i]}, {32768*i - 1024*i}, {t1 if i & 2 else t0}")
    k(f"s_lshl_b32 {sC}, {sj}, 18",
      f"s_lshl_b32 {sW}, {sh}, 8",
      f"s_lshl_b32 {sm0c}, {sw}, 13",
      f"s_lshl_b32 {sm0w}, {sw}, 12", f"s_add_u32 {sm0w}, {sm0w}, 65536")
    def dma_stage(n):
        sl = (n & 1) * 32768
        L = []
        for half in range(2):
            g = [f"s_add_u32 m0, {sm0c}, {sl + 4096*half}"]
            L.append(g)
            for i in range(4):
                L.append([f"buffer_load_dwordx4 {vC[4*half+i]}, {ckv}, {sC} offen offset:{1024*i} lds"])
        L.append([f"s_add_u32 {sC}, {sC}, 128"])
        for mat, srd in enumerate((wuk, wuv)):
            L.append([f"s_add_u32 m0, {sm0w}, {sl + 16384*mat}"])
            for i in range(4):
                L.append([f"buffer_load_dwordx4 {vW[i]}, {srd}, {sW} offen offset:{1024*i} lds"])
        L.append([f"s_add_u32 {sW}, {sW}, {64*8192}"])
        return L
    def flat(L):
        o = []
        for g in L:
            o.extend(g)
            if "m0" in g[0]: o.append("s_nop 0")
        return o
    k(flat(dma_stage(0)))
    xr = V(8, 2); vX = V();
    k(f"v_and_b32 {t0}, 7, {lane}", f"v_lshlrev_b32 {t0}, 10, {t0}",
      f"v_lshrrev_b32 {t1}, 3, {lane}", f"v_lshl_add_u32 {t0}, {t1}, 4, {t0}", f"v_lshl_add_u32 {vX}, {wv}, 8, {t0}",
      f"s_lshl_b32 {st0}, s2, 13",
      f"buffer_load_dwordx4 {xr[0:4]}, {vX}, {xs}, {st0} offen", f"buffer_load_dwordx4 {xr[4:8]}, {vX}, {xs}, {st0} offen offset:128")
    k(flat(dma_stage(1)))
    rC = [V(), V()]; rW = [V(), V()]
    k(f"v_and_b32 {t0}, 15, {lane}", f"v_lshrrev_b32 {t1}, 1, {t0}", f"v_lshrrev_b32 {t2}, 4, {lane}",
      f"v_xor_b32 {t1}, {t1}, {t2}", f"v_lshlrev_b32 {t1}, 4, {t1}", f"v_lshl_add_u32 {t0}, {t0}, 7, {t1}",
      f"v_lshrrev_b32 {t1}, 1, {wv}", f"v_lshl_add_u32 {rC[0]}, {t1}, 14, {t0}", f"v_xor_b32 {rC[1]}, 64, {rC[0]}")
    k(f"v_lshlrev_b32 {t0}, 11, {t2}",
      f"v_bfe_u32 {t1}, {lane}, 2, 2", f"v_lshl_add_u32 {t0}, {t1}, 6, {t0}",
      f"v_and_b32 {t1}, 3, {lane}", f"v_lshl_add_u32 {t0}, {t1}, 3, {t0}",
      f"v_and_b32 {t1}, 1, {t2}", f"v_lshl_add_u32 {t0}, {t1}, 5, {t0}",
      f"v_and_b32 {t1}, 1, {wv}", f"v_lshl_add_u32 {t0}, {t1}, 9, {t0}",
      f"v_add_u32 {rW[0]}, 65536, {t0}", f"v_xor_b32 {rW[1]}, 32, {rW[0]}")
    F = [V(64, 4), V(64, 4)]
    def cf(st, kt): return F[st].sub(4*kt, 4)
    def wf(st, ct): return F[st].sub(32 + 4*ct, 4)
    def reads(i):
        n, ks, st = i >> 1, i & 1, i & 1
        sl = (n & 1) * 32768
        L = []
        for q in range(8):
            ct = q; mat, Pl, u = ct >> 2, (ct >> 1) & 1, ct & 1
            for t in range(2):
                L.append(f"ds_read_b64_tr_b16 {wf(st, ct).sub(2*t, 2)}, {rW[u]} offset:{sl + mat*16384 + ks*8192 + t*1024 + Pl*256}")
            L.append(f"ds_read_b128 {cf(st, q)}, {rC[ks]} offset:{sl + q*2048}")
        return L
    def acc(kt, ct): return R('a', (kt*8 + ct)*4, 4)
    def mfmas(i):
        st = i & 1; L = []
        for ct in range(8):
            for kt in range(8):
                d = acc(kt, ct); c = 0 if i == 0 else d
                if ct < 4: L.append(f"{M16} {d}, {wf(st, ct)}, {cf(st, kt)}, {c}")
                else:      L.append(f"{M16} {d}, {cf(st, kt)}, {wf(st, ct)}, {c}")
        return L
    xf = V(16); s1, s2_, u0, u1 = V(), V(), V(), V(); pr = V(8, 2); vXo = V(); vL = V()
    LNS = 131072
    ln1 = []
    for q in range(8):
        ln1 += [f"v_lshlrev_b32 {xf[2*q]}, 16, {xr[q]}", f"v_and_b32 {xf[2*q+1]}, 0xffff0000, {xr[q]}"]
    ln1 += [f"v_add_f32 {s1}, {xf[0]}, {xf[1]}", f"v_mul_f32 {s2_}, {xf[0]}, {xf[0]}", f"v_fmac_f32 {s2_}, {xf[1]}, {xf[1]}"]
    for q in range(2, 16):
        ln1 += [f"v_add_f32 {s1}, {s1}, {xf[q]}", f"v_fmac_f32 {s2_}, {xf[q]}, {xf[q]}"]
    ln1 += ["v_nop", f"v_add_f32_dpp {s1}, {s1}, {s1} row_ror:8 row_mask:0xf bank_mask:0xf",
            f"v_add_f32_dpp {s2_}, {s2_}, {s2_} row_ror:8 row_mask:0xf bank_mask:0xf"]
    for sw_ in ("v_permlane16_swap_b32", "v_permlane32_swap_b32"):
        ln1 += [f"v_mov_b32 {u0}, {s1}", f"v_mov_b32 {u1}, {s2_}", "v_nop", f"{sw_} {u0}, {s1}", f"{sw_} {u1}, {s2_}",
                f"v_add_f32 {s1}, {s1}, {u0}", f"v_add_f32 {s2_}, {s2_}, {u1}"]
    ln1 += [f"v_and_b32 {u0}, 7, {lane}", f"v_lshlrev_b32 {vL}, 5, {u0}", f"v_add_u32 {vL}, {LNS}, {vL}", f"v_lshl_add_u32 {u1}, {wv}, 2, {vL}",
            f"ds_write2_b32 {u1}, {s1}, {s2_} offset0:0 offset1:4"]
    ln2a = [f"ds_read_b128 {pr[0:4]}, {vL}", f"ds_read_b128 {pr[4:8]}, {vL} offset:16"]
    ln2 = [f"v_add_f32 {s1}, {pr[0]}, {pr[1]}", f"v_add_f32 {s2_}, {pr[4]}, {pr[5]}", f"v_add_f32 {u0}, {pr[2]}, {pr[3]}", f"v_add_f32 {u1}, {pr[6]}, {pr[7]}",
           f"v_add_f32 {s1}, {s1}, {u0}", f"v_add_f32 {s2_}, {s2_}, {u1}",
           f"v_mul_f32 {s1}, {f2u(1/512)}, {s1}", f"v_mul_f32 {s2_}, {f2u(1/512)}, {s2_}",
           f"v_fma_f32 {s2_}, -{s1}, {s1}, {s2_}", f"v_max_f32 {s2_}, 0, {s2_}", f"v_add_f32 {s2_}, {f2u(1e-5)}, {s2_}",
           f"v_rsq_f32 {s2_}, {s2_}", "v_nop", f"v_mul_f32 {s2_}, {f2u(QSCALE)}, {s2_}", f"v_mul_f32 {s1}, {s1}, {s2_}"]
    for q in range(16): ln2 += [f"v_fma_f32 {xf[q]}, {xf[q]}, {s2_}, -{s1}"]
    for q in range(8): ln2 += [f"v_cvt_pk_bf16_f32 {xr[q]}, {xf[2*q]}, {xf[2*q+1]}"]
    ln2 += [f"v_lshrrev_b32 {u0}, 3, {lane}", f"v_lshlrev_b32 {u0}, 9, {u0}", f"v_and_b32 {u1}, 7, {lane}", f"v_lshl_add_u32 {u0}, {u1}, 4, {u0}",
            f"v_lshl_add_u32 {vXo}, {wv}, 13, {u0}"]
    ln3 = [f"s_lshr_b32 {st0}, s2, 2", f"s_lshl_b32 {st0}, {st0}, 15", f"s_and_b32 {st1}, s2, 3", f"s_lshl_b32 {st1}, {st1}, 7",
           f"s_add_u32 {st0}, {st0}, {st1}", f"s_add_u32 {st1}, {st0}, 4096",
           f"buffer_store_dwordx4 {xr[0:4]}, {vXo}, {ws}, {st0} offen sc1", f"buffer_store_dwordx4 {xr[4:8]}, {vXo}, {ws}, {st1} offen sc1"]
    k("s_waitcnt vmcnt(18)", "s_barrier")
    k(diag.stamp())
    k(reads(0))
    for i in range(16):
        sl = Slots(64)
        pre = ["s_waitcnt lgkmcnt(0)"]
        if i & 1 and i < 15:
            pre = ["s_waitcnt vmcnt(0) lgkmcnt(0)", "s_barrier"]
        k(pre)
        if i < 15:
            rd = reads(i + 1)
            for q, x in enumerate(rd): sl.put(2*q + 1, x)
        n = (i + 1) // 2 + 1
        if i & 1 and n < 8:
            for q, g in enumerate(dma_stage(n)): sl.put(2*q, g)
        if i == 2:
            for q, x in enumerate(ln1): sl.put(min(q, 63) if q < 48 else 48 + (q - 48) // 2, x)
        if i == 3: sl.put(50, ln2a[0]); sl.put(52, ln2a[1])
        if i == 4:
            for q, x in enumerate(ln2): sl.put(q, x)
            for q, x in enumerate(ln3): sl.put(50 + q, x)
        k(sl.weave(mfmas(i), sort=(i != 2)))
    k(diag.stamp())
    vK, vV = V(), V(); o = [V(4, 2) for _ in range(4)]; tm = V(8)
    k(f"v_lshrrev_b32 {t2}, 4, {lane}",
      f"v_bfe_u32 {t0}, {lane}, 3, 1", f"v_lshlrev_b32 {t0}, 8, {t0}", f"v_and_b32 {t1}, 7, {lane}", f"v_lshl_add_u32 {t0}, {t1}, 4, {t0}",
      f"v_lshrrev_b32 {t1}, 1, {wv}", f"v_lshl_add_u32 {t0}, {t1}, 16, {t0}",
      f"v_lshl_add_u32 {vK}, {t2}, 9, {t0}",
      f"v_and_b32 {t1}, 1, {wv}", f"v_lshl_add_u32 {vK}, {t1}, 12, {vK}",
      f"v_lshl_add_u32 {vV}, {t1}, 11, {t0}",
      f"v_and_b32 {t1}, 1, {t2}", f"v_lshl_add_u32 {vV}, {t1}, 9, {vV}",
      f"v_lshrrev_b32 {t1}, 1, {t2}", f"v_lshl_add_u32 {vV}, {t1}, 12, {vV}",
      f"s_lshl_b32 {st0}, {sh}, 20", f"s_lshl_b32 {st1}, {sj}, 17", f"s_add_u32 {st0}, {st0}, {st1}", f"s_add_u32 {st0}, {st0}, {WS_KV}")
    cnt = 0
    def chunk(ta, tb, voff, soff, imm):
        nonlocal cnt
        oo = o[cnt % 4]; cnt += 1
        L = []
        for e in range(4): L.append(f"v_accvgpr_read_b32 {tm[e]}, {ta[e]}")
        for e in range(4): L.append(f"v_accvgpr_read_b32 {tm[4+e]}, {tb[e]}")
        for e in range(4): L.append(f"v_cvt_pk_bf16_f32 {oo[e]}, {tm[2*e]}, {tm[2*e+1]}")
        L.append(f"buffer_store_dwordx4 {oo}, {voff}, {ws}, {soff} offen offset:{imm} sc1")
        return L
    for p in range(4):
        k(f"s_add_u32 {st1}, {st0}, {(p >> 1)*32768 + (p & 1)*8192}")
        for b in range(2):
            for Pl in range(2):
                k(chunk(acc(2*p + b, 2*Pl), acc(2*p + b, 2*Pl + 1), vK, st1, Pl*2048 + b*128))
    for p in range(4):
        k(f"s_add_u32 {st1}, {st0}, {16384 + (p >> 1)*32768 + (p & 1)*8192}")
        for Pl in range(2):
            for u in range(2):
                k(chunk(acc(2*p, 4 + 2*Pl + u), acc(2*p + 1, 4 + 2*Pl + u), vV, st1, Pl*1024 + u*128))

def build_p1(dg=False, kidx=0):
    k = Kern("p1_kernel")
    diag = Diag(k, kidx, dg)
    k(diag.stamp())
    k(f"s_cmp_ge_u32 s2, 256", f"s_cbranch_scc1 {k.name}_end")
    emit_p1(k, Alloc('s', 4, 76), Alloc('v', 1, 256), diag)
    if dg:
        k(diag.stamp()); k("s_waitcnt vmcnt(0)")
    diag.flush()
    k.label(k.name + "_end"); k("s_endpgm")
    return k, (k.name, 256, 256, 131072 + 256)

if __name__ == "__main__":
    k, l = build_p1(True)
    check(k)
    write_file("../dev/p1.s", "; p1 test", [l], [k])
```

```python
from common import *
import sys
LA = 8
THR = 2.0**30

class Att:
    def __init__(self, k, S, diag, thr=THR):
        self.k, self.S, self.diag, self.thr = k, S, diag, thr
        self.Sb = {('B', 0): R('v', 0, 32), ('B', 1): R('v', 32, 32), ('A', 0): R('v', 64, 32), ('A', 1): R('v', 96, 32)}
        self.PB0 = [R('v', 128, 4), R('v', 132, 4)]
        self.PB = R('v', 136, 12); self.PA = R('v', 148, 16)
        self.negm = {'B': R('v', 164, 16), 'A': R('v', 180, 16)}
        self.tmp = R('v', 196, 8)
        V = Alloc('v', 232, 256); self.V = V
        self.l = {'A': V(), 'B': V()}; self.ls = {'A': V(), 'B': V()}
        self.thrq = {'A': V(), 'B': V()}
        self.rd = V(); self.vd = [V(), V()]; self.lane = V(); self.wv = V(); self.t = [V(), V(), V()]
        self.ninf = V(); self.vst = V()
        self.O = {'A': R('a', 0, 64), 'B': R('a', 64, 64)}
        self.Q = {'A': R('a', 128, 32), 'B': R('a', 160, 32)}
        self.ring = R('a', 192, 64)
        self.rare = []
    def P(self, X, ks, par):
        if X == 'A': return self.PA.sub(4*ks, 4)
        return self.PB0[par] if ks == 0 else self.PB.sub(4*(ks - 1), 4)
    def fr(self, f): return self.ring.sub(4*(f % 16), 4)

    def setup(self):
        k, S = self.k, self.S
        self.wq, self.ws, self.kv = S(4), S(4), S(4)
        load_srds(k, dict(wq=self.wq, ws=self.ws))
        self.sh, self.sj, self.sw, self.sD, self.sM, self.sT, self.sN, self.sthr = [S() for _ in range(8)]
        self.st = [S(), S(), S()]; self.sxA, self.sxB, self.sWq = S(), S(), S()
        self.mk = [S(2), S(2), S(2), S(2)]; self.ret = S(2); self.tgt = S(2)
        k(f"v_and_b32 {self.lane}, 63, v0", f"v_lshrrev_b32 {self.wv}, 6, v0",
          f"s_and_b32 {self.sh}, s2, 31", f"s_lshr_b32 {self.sj}, s2, 5",
          f"v_readfirstlane_b32 {self.sw}, {self.wv}")
        st = self.st
        k(f"s_lshl_b32 {st[0]}, {self.sh}, 20", f"s_add_u32 {st[0]}, {st[0]}, {WS_KV}",
          f"s_add_u32 {self.kv[0]}, {self.ws[0]}, {st[0]}", f"s_addc_u32 {self.kv[1]}, {self.ws[1]}, 0",
          f"s_sub_u32 {st[0]}, 16, {self.sj}", f"s_lshl_b32 {self.kv[2]}, {st[0]}, 16", f"s_mov_b32 {self.kv[3]}, 0x20000")
        k(f"v_lshlrev_b32 {self.rd}, 4, {self.lane}",
          f"v_lshl_add_u32 {self.vd[0]}, {self.wv}, 13, {self.rd}", f"v_add_u32 {self.vd[1]}, 4096, {self.vd[0]}",
          f"s_mov_b32 {self.sthr}, {f2u(self.thr)}", f"v_mov_b32 {self.ninf}, 0xff800000")
        k(f"s_lshl_b32 {st[0]}, {self.sj}, 2", f"s_add_u32 {self.sxA}, {st[0]}, {self.sw}",
          f"s_sub_u32 {st[0]}, 60, {st[0]}", f"s_add_u32 {self.sxB}, {st[0]}, {self.sw}")
        t = self.t
        k(f"v_and_b32 {t[0]}, 31, {self.lane}", f"v_lshrrev_b32 {t[1]}, 5, {self.lane}", f"v_lshlrev_b32 {t[1]}, 2, {t[1]}",
          f"v_sub_u32 {t[0]}, {t[0]}, {t[1]}",
          f"s_lshl_b32 {st[0]}, {self.sxA}, 5", f"s_lshl_b32 {st[1]}, {self.sxB}, 5",
          f"v_add_u32 {self.thrq['A']}, {st[0]}, {t[0]}", f"v_add_u32 {self.thrq['B']}, {st[1]}, {t[0]}")
        k(f"v_bfe_u32 {t[0]}, {self.lane}, 4, 1", f"v_lshlrev_b32 {t[0]}, 17, {t[0]}",
          f"v_lshrrev_b32 {t[1]}, 5, {self.lane}", f"v_lshl_add_u32 {t[0]}, {t[1]}, 8, {t[0]}",
          f"v_and_b32 {t[1]}, 15, {self.lane}", f"v_lshl_add_u32 {self.vst}, {t[1]}, 4, {t[0]}")

    def dma_c(self, par):
        L = []
        for hf in range(2):
            L.append(f"s_add_u32 m0, {self.sM}, {par*32768 + hf*4096}")
            for i in range(4):
                L.append(f"buffer_load_dwordx4 {self.vd[hf]}, {self.kv}, {self.sD} offen offset:{1024*i} lds")
        L.append(f"s_add_u32 {self.sD}, {self.sD}, 32768")
        return L

    def qproj(self):
        k, t, st = self.k, self.t, self.st
        WREG = [112, 0, 16, 32, 48, 64, 80, 96]
        D = 4
        Wf = [R('v', 128, 16), R('v', 144, 16)]
        X = R('v', 160, 8*(D + 1))
        vW = [R('v', 204 + i) for i in range(4)]; rW = [R('v', 208), R('v', 209)]
        k(f"v_bfe_u32 {t[0]}, {self.lane}, 2, 2", f"v_lshlrev_b32 {t[0]}, 13, {t[0]}",
          f"v_lshrrev_b32 {t[1]}, 4, {self.lane}", f"v_lshl_add_u32 {t[0]}, {t[1]}, 6, {t[0]}",
          f"v_and_b32 {t[1]}, 3, {self.lane}", f"v_lshl_add_u32 {t[0]}, {t[1]}, 4, {t[0]}",
          f"v_lshl_add_u32 {t[0]}, {self.wv}, 17, {t[0]}")
        for i in range(4): k(f"v_add_u32 {vW[i]}, {31744*i}, {t[0]}")
        k(f"v_lshrrev_b32 {t[0]}, 5, {self.lane}", f"v_lshlrev_b32 {t[0]}, 11, {t[0]}",
          f"v_bfe_u32 {t[1]}, {self.lane}, 2, 2", f"v_lshl_add_u32 {t[0]}, {t[1]}, 6, {t[0]}",
          f"v_bfe_u32 {t[1]}, {self.lane}, 4, 1", f"v_lshl_add_u32 {t[0]}, {t[1]}, 5, {t[0]}",
          f"v_and_b32 {t[1]}, 3, {self.lane}", f"v_lshl_add_u32 {rW[0]}, {t[1]}, 3, {t[0]}", f"v_add_u32 {rW[1]}, 65536, {rW[0]}")
        sxa, sxb = st[0], st[1]; sw12 = st[2]
        k(f"s_lshl_b32 {self.sWq}, {self.sh}, 8", f"s_lshl_b32 {sxa}, {self.sxA}, 15", f"s_lshl_b32 {sxb}, {self.sxB}, 15",
          f"s_lshl_b32 {sw12}, {self.sw}, 12")
        q = VmQ()
        def wdma(n, i):
            L = []
            if i == 0: L.append(f"s_add_u32 m0, {sw12}, {WREG[n]*1024}")
            else_ = f"buffer_load_dwordx4 {vW[i]}, {self.wq}, {self.sWq} offen offset:{1024*i} lds"
            q.issue(("W", n))
            return L, else_, ([f"s_add_u32 {self.sWq}, {self.sWq}, {64*8192}"] if i == 3 else [])
        def xld(i):
            r = X.sub(8*(i % (D + 1)), 8); q.issue(("X", i), 2)
            L = [f"buffer_load_dwordx4 {r[0:4]}, {self.rd}, {self.ws}, {sxb} offen offset:{1024*(i % 4)}",
                 f"buffer_load_dwordx4 {r[4:8]}, {self.rd}, {self.ws}, {sxa} offen offset:{1024*(i % 4)}"]
            return L, ([f"s_add_u32 {sxa}, {sxa}, 4096", f"s_add_u32 {sxb}, {sxb}, 4096"] if i % 4 == 3 else [])
        def wread(i):
            n, ks = i >> 2, i & 3; base = WREG[n]*1024; r = rW[base >= 65536]; base %= 65536
            return [f"ds_read_b64_tr_b16 {Wf[i & 1].sub(4*P + 2*tt, 2)}, {r} offset:{base + ks*4096 + tt*1024 + P*256}" for P in range(4) for tt in range(2)]
        for i in range(4):
            a_, b_, c_ = wdma(0, i); k(a_, "s_nop 0" if a_ else [], b_, c_)
        for i in range(D):
            a_, b_ = xld(i); k(a_, b_)
        for i in range(4):
            a_, b_, c_ = wdma(1, i); k(a_, "s_nop 0" if a_ else [], b_, c_)
        k(f"s_waitcnt vmcnt({q.need(('W', 0))})", "s_barrier")
        k(self.diag.stamp())
        k(wread(0))
        kvd = [f"s_lshl_b32 {self.sM}, {self.sw}, 12", f"s_add_u32 m0, {self.sM}, {112*1024}"]
        kvd += [f"buffer_load_dwordx4 {self.rd}, {self.kv}, {self.sM} offen offset:{1024*i} lds" for i in range(4)]
        kvd += [f"s_lshl_b32 {self.sM}, {self.sw}, 13", f"s_mov_b32 {self.sD}, 16384"] + self.dma_c(0) + self.dma_c(1)
        kvd += [f"s_xor_b32 {self.sM}, {self.sM}, 65536"]
        kq = 0
        for i in range(32):
            n = i >> 2
            mf = []
            xr = X.sub(8*(i % (D + 1)), 8)
            for P in range(4):
                for Xb, o in (('B', 0), ('A', 4)):
                    d = R('v', (64 if Xb == 'A' else 0) + 16*P, 16)
                    mf.append(f"{M32} {d}, {Wf[i & 1].sub(4*P, 4)}, {xr.sub(o, 4)}, {0 if i == 0 else d}")
            sc = Sched(mf)
            bar = (i & 3) == 3 and i < 31
            nv = q.need(("X", i), *([("W", n + 1)] if bar else []))
            k(f"s_waitcnt vmcnt({nv}) lgkmcnt(0)")
            if bar: sc.fix(0, "s_barrier")
            if i < 31:
                rd = wread(i + 1)
                for z in range(8): sc.fix(z*6 // 8, rd[z])
            if i + D < 32:
                a_, b_ = xld(i + D); sc.fix(1, a_[0]); sc.fix(2, a_[1]); sc.fix(3, b_)
            if n + 2 < 8:
                a_, b_, c_ = wdma(n + 2, i & 3); sc.fix(4, a_); sc.fix(5, b_); sc.fix(6, c_)
            if i >= 24:
                for z in range(4):
                    if kq < len(kvd):
                        x = kvd[kq]; kq += 1; sc.fix(4 + z, x)
                        if "lds" in x: q.issue("KV0" if kq <= 6 else "KV")
            k(sc.out())
        assert kq == len(kvd), (kq, len(kvd))
        self.q = q
        k("s_nop 7")
        for Xb in "BA":
            for z in range(32):
                b = (64 if Xb == 'A' else 0) + 2*z
                k(f"v_cvt_pk_bf16_f32 {self.tmp[z % 8]}, v{b}, v{b+1}")
                if z >= 2: k(f"v_accvgpr_write_b32 {self.Q[Xb][z-2]}, {self.tmp[(z-2) % 8]}")
            for z in (30, 31): k(f"v_accvgpr_write_b32 {self.Q[Xb][z]}, {self.tmp[z % 8]}")

    def maskinit(self, X, par, src):
        L = []; Sx = self.Sb[(X, par)]; th = self.t[2]
        L.append(f"v_subrev_u32 {th}, {self.sT}, {self.thrq[X]}")
        items = []
        for e in range(32):
            off = 32*(e >> 4) + 8*((e & 15) >> 2) + (e & 3)
            items.append((f"v_cmp_le_i32 {self.mk[e % 4]}, {off}, {th}", f"v_cndmask_b32 {Sx[e]}, {self.ninf}, {src}, {self.mk[e % 4]}"))
        for e in range(34):
            if e < 32: L.append(items[e][0])
            else: L.append("v_nop")
            if e >= 2: L.append(items[e-2][1])
        return L
    def softmax(self, blocks, par, pv_last):
        el = []
        for ks in range(4):
            for X in blocks:
                for e in range(8): el.append((X, 8*ks + e))
        it = []; n = len(el); tm = self.tmp
        def post(z):
            X, e = el[z]; o = []
            if e == 1: o.append((f"v_add_f32 {self.ls[X]}, {tm[(z-1) % 8]}, {tm[z % 8]}", 0))
            elif e > 1: o.append((f"v_add_f32 {self.ls[X]}, {self.ls[X]}, {tm[z % 8]}", 0))
            if e & 1:
                ks = e >> 3
                early = 0 if (X == 'B' and ks == 0) else pv_last.get((X, ks), 0)
                o.append((f"v_cvt_pk_bf16_f32 {self.P(X, ks, par)[(e & 7) >> 1]}, {tm[(z-1) % 8]}, {tm[z % 8]}", early))
            return o
        for z in range(n):
            X, e = el[z]
            it.append((f"v_exp_f32 {tm[z % 8]}, {self.Sb[(X, par)][e]}", 0))
            if z >= 1: it += post(z - 1)
        it += post(n - 1)
        return it
    def groups(self, t_par, pv, qk):
        g = []
        if pv: g.append(('V', t_par ^ 1))
        if qk: g.append(('K', t_par))
        return g
    def rdfrag(self, grp, f):
        kind, sp = grp
        return f"ds_read_b128 {self.fr(f)}, {self.rd} offset:{sp*32768 + (16384 if kind == 'K' else 0) + 1024*f}"

    def iteration(self, par, pv="", sm="", qk="", mask="", nxt=None, first_pv=False, extra=None, name="", newslot_next=False, dma=True):
        k = self.k
        mf = []; use = []
        pv_last = {}
        G = self.groups(par, pv, qk)
        gi = 0
        if pv:
            for ks in range(4):
                for dt in range(4):
                    for z, X in enumerate(pv):
                        d = self.O[X].sub(16*dt, 16)
                        c = 0 if (first_pv and ks == 0) else d
                        mf.append(f"{M32} {d}, {self.fr(4*ks + dt)}, {self.P(X, ks, par ^ 1)}, {c}")
                        use.append(16*gi + 4*ks + dt if z == 0 else None)
                        pv_last[(X, ks)] = len(mf) - 1
            gi += 1
        qk0 = len(mf)
        if qk:
            for kt in range(2):
                for s_ in range(8):
                    for z, X in enumerate(qk):
                        d = self.Sb[(X, par ^ 1)].sub(16*kt, 16)
                        c = d if (s_ > 0 or X in mask) else self.negm[X]
                        mf.append(f"{M32} {d}, {self.fr(8*kt + s_)}, {self.Q[X].sub(4*s_, 4)}, {c}")
                        use.append(16*gi + 8*kt + s_ if z == 0 else None)
            gi += 1
        sc = Sched(mf)
        allg = G + ([nxt] if nxt else [])
        nf = 16*len(G)
        bar_at = None
        for i, u in enumerate(use):
            if u is None: continue
            F = u + LA
            if F >= nf + (LA if nxt else 0): continue
            grp = allg[F // 16]
            if F % 16 == 0:
                opens = (grp[0] == 'K') or (F >= nf and newslot_next)
                if opens:
                    sc.fix(i, "s_waitcnt vmcnt(8)", "s_barrier"); bar_at = i
                    if grp[1] == 0: sc.fix(i - 1, f"v_xor_b32 {self.rd}, 0x10000, {self.rd}", where="post")
                    dpar = grp[1]
            sc.fix(i, self.rdfrag(grp, F % 16))
        for i, u in enumerate(use):
            if u is None or u % 4: continue
            issued = min(u + LA, nf + (LA if nxt else 0))
            n = max(0, issued - (u + 4))
            if i == 0: k(f"s_waitcnt lgkmcnt({n})")
            else: sc.fix(i - 1, f"s_waitcnt lgkmcnt({n})")
        if bar_at is not None and dma:
            d = self.dma_c(dpar)
            if dpar == 1: d.append(f"s_xor_b32 {self.sM}, {self.sM}, 65536")
            hi = min(len(mf), bar_at + 1 + 2*len(d))
            if hi - bar_at - 1 >= len(d): sc.scatter(d, bar_at + 1, hi)
            else:
                d2 = []
                for x in d: d2 += [x, "s_nop 0"] if "m0" in x else [x]
                sc.scatter(d2, bar_at + 1, hi, mingap=0)
        if mask:
            m = []
            for X in mask: m += self.maskinit(X, par ^ 1, self.negm[X][0])
            if qk0 >= 8: sc.flow([(x, 0) for x in m], 0, qk0 - 1)
            else: k(m, "s_nop 1")
        if qk: sc.fix(len(mf) - 1, f"s_add_u32 {self.sT}, {self.sT}, 64")
        if extra: extra(sc)
        if sm:
            it = self.softmax(sm, par, pv_last)
            if len(sm) == 2: it.append((f"v_max_f32 {self.t[0]}, {self.ls['A']}, {self.ls['B']}", 0)); cv = self.t[0]
            else: cv = self.ls[sm]
            it.append((f"v_cmp_lt_f32 vcc, {self.sthr}, {cv}", 0))
            sc.flow(it)
        k(sc.out())
        if sm:
            lr, lb = k.lab("rare"), k.lab("back")
            k(f"s_cbranch_vccnz {lr}"); k.label(lb)
            for X in sm: k(f"v_add_f32 {self.l[X]}, {self.l[X]}, {self.ls[X]}")
            self.rare.append((lr, lb, sm, par))
        print(f"  iter {name:8s} mfma {len(mf):3d} est cycles {sc.est()} ({sc.est()/len(mf):.1f})")

    def rowmax(self, Sx, dst):
        t1 = self.t[1]
        L = [f"v_max3_f32 {dst}, {Sx[0]}, {Sx[1]}, {Sx[2]}", f"v_max3_f32 {t1}, {Sx[3]}, {Sx[4]}, {Sx[5]}"]
        for z in range(6, 32, 4):
            L.append(f"v_max3_f32 {dst}, {dst}, {Sx[z]}, {Sx[z+1]}")
            if z + 3 < 32: L.append(f"v_max3_f32 {t1}, {t1}, {Sx[z+2]}, {Sx[z+3]}")
        L += [f"v_max_f32 {dst}, {dst}, {t1}", f"v_mov_b32 {t1}, {dst}", "s_nop 1", f"v_permlane32_swap_b32 {t1}, {dst}", f"v_max_f32 {dst}, {dst}, {t1}"]
        return L

    def emit_rare(self):
        k = self.k
        subs = {}
        rets = {}
        for lr, lb, sm, par in self.rare:
            k.label(lr)
            for X in sm:
                sub = subs.setdefault((X, par), k.lab(f"fix{X}{par}"))
                here = k.lab("pc"); after = k.lab("ret")
                k(f"s_getpc_b64 {self.tgt}"); k.label(here)
                k(f"s_add_u32 {self.tgt[0]}, {self.tgt[0]}, {sub}-{here}", f"s_addc_u32 {self.tgt[1]}, {self.tgt[1]}, 0",
                  f"s_swappc_b64 {self.ret}, {self.tgt} ; ->{sub}")
                k.label(after); rets.setdefault((X, par), []).append(after)
            k(f"s_branch {lb}")
        for (X, par), sub in subs.items():
            k.label(sub)
            Sc, Sn = self.Sb[(X, par)], self.Sb[(X, par ^ 1)]; d, f = self.t[0], self.t[2]; tm = self.tmp
            k("s_nop 15")
            k(self.rowmax(Sc, d))
            k(f"v_max_f32 {d}, 0, {d}", f"v_sub_f32 {f}, 0, {d}", f"v_exp_f32 {f}, {f}")
            for e in range(16): k(f"v_sub_f32 {self.negm[X][e]}, {self.negm[X][e]}, {d}")
            for e in range(32): k(f"v_sub_f32 {Sc[e]}, {Sc[e]}, {d}", f"v_sub_f32 {Sn[e]}, {Sn[e]}, {d}")
            k(f"v_mul_f32 {self.l[X]}, {self.l[X]}, {f}")
            for e in range(64):
                k(f"v_accvgpr_read_b32 {tm[0]}, {self.O[X][e]}", f"v_mul_f32 {tm[0]}, {tm[0]}, {f}", f"v_accvgpr_write_b32 {self.O[X][e]}, {tm[0]}")
            k([x for x, _ in self.softmax(X, par, {})][:-2], "s_nop 0", [x for x, _ in self.softmax(X, par, {})][-2:])
            k("s_nop 1", f"s_setpc_b64 {self.ret} ; " + " ".join("->" + r for r in rets[(X, par)]))

    def epilogue(self, X):
        k, t, st, tm = self.k, self.t, self.st, self.tmp
        sx = self.sxA if X == 'A' else self.sxB
        l = self.l[X]
        k(f"v_mov_b32 {t[0]}, {l}", f"s_lshl_b32 {st[0]}, {sx}, 18", f"s_lshl_b32 {st[1]}, {self.sh}, 12",
          f"v_permlane32_swap_b32 {t[0]}, {l}", f"s_add_u32 {st[0]}, {st[0]}, {st[1]}", f"s_add_u32 {st[0]}, {st[0]}, {WS_CTX}",
          f"v_add_f32 {t[0]}, {t[0]}, {l}", f"v_rcp_f32 {t[0]}, {t[0]}", "s_nop 7")
        ob = self.Sb[(X, 0)]
        for c in range(8):
            o = ob.sub(4*(c % 4), 4)
            for e in range(8): k(f"v_accvgpr_read_b32 {tm[e]}, {self.O[X][8*c + e]}")
            for e in range(8): k(f"v_mul_f32 {tm[e]}, {tm[e]}, {t[0]}")
            for e in range(4): k(f"v_cvt_pk_bf16_f32 {o[e]}, {tm[2*e]}, {tm[2*e+1]}")
            k(f"buffer_store_dwordx4 {o}, {self.vst}, {self.ws}, {st[0]} offen offset:{512*c}")

    def attention(self):
        k = self.k
        it = self.iteration
        Vg = lambda p: ('V', p)
        k(f"s_mov_b32 {self.sT}, 0", f"v_xor_b32 {self.rd}, 0x10000, {self.rd}")
        for X in "AB":
            k(f"v_mov_b32 {self.l[X]}, 0")
            for e in range(16): k(f"v_mov_b32 {self.negm[X][e]}, 0")
            for e in range(64): k(f"v_accvgpr_write_b32 {self.O[X][e]}, 0")
        k(f"s_waitcnt vmcnt({self.q.need('KV0')})", "s_barrier")
        for f in range(LA): k(self.rdfrag(('K', 1), f))
        it(1, qk="BA", mask="A", nxt=('K', 0), name="t-1")
        k("s_nop 7", "s_nop 3")
        for X in "BA":
            d = self.t[0]; Sx = self.Sb[(X, 0)]
            k(self.rowmax(Sx, d))
            for e in range(16): k(f"v_sub_f32 {self.negm[X][e]}, 0, {d}")
            for e in range(32): k(f"v_sub_f32 {Sx[e]}, {Sx[e]}, {d}")
        k(self.diag.stamp())
        L0m, LdA, LdA7, LdB, Lp1, Lm1, Lp2 = [k.lab(x) for x in ("i0m", "drA", "drA7", "drB", "p1", "m1", "p2")]
        k(f"s_cmp_eq_u32 {self.sj}, 0", f"s_cbranch_scc1 {L0m}")
        it(0, sm="BA", qk="BA", nxt=Vg(0), name="t0")
        k(f"s_sub_u32 {self.sN}, {self.sj}, 1", f"s_cmp_eq_u32 {self.sN}, 0", f"s_cbranch_scc1 {Lm1}")
        k(".p2align 3"); k.label(Lp1)
        it(1, pv="BA", sm="BA", qk="BA", nxt=Vg(1), name="p1odd")
        it(0, pv="BA", sm="BA", qk="BA", nxt=Vg(0), name="p1even",
           extra=lambda sc: (sc.fix(2, f"s_sub_u32 {self.sN}, {self.sN}, 1")))
        k(f"s_cmp_lg_u32 {self.sN}, 0", f"s_cbranch_scc1 {Lp1}")
        k.label(Lm1)
        it(1, pv="BA", sm="BA", qk="BA", mask="A", nxt=Vg(1), name="m1odd")
        it(0, pv="BA", sm="BA", qk="BA", mask="A", nxt=Vg(0), name="m1even")
        k(f"s_cmp_eq_u32 {self.sj}, 7", f"s_cbranch_scc1 {LdA7}")
        k.label(LdA)
        it(1, pv="BA", sm="BA", qk="B", nxt=Vg(1), name="dAodd")
        it(0, pv="BA", sm="B", qk="B", nxt=Vg(0), name="dAeven")
        self.epilogue('A')
        k(f"s_lshl_b32 {self.sN}, {self.sj}, 1", f"s_sub_u32 {self.sN}, 13, {self.sN}")
        k(".p2align 3"); k.label(Lp2)
        it(1, pv="B", sm="B", qk="B", nxt=Vg(1), name="p2odd")
        it(0, pv="B", sm="B", qk="B", nxt=Vg(0), name="p2even",
           extra=lambda sc: (sc.fix(2, f"s_sub_u32 {self.sN}, {self.sN}, 1")))
        k(f"s_cmp_lg_u32 {self.sN}, 0", f"s_cbranch_scc1 {Lp2}")
        it(1, pv="B", sm="B", qk="B", mask="B", nxt=Vg(1), name="m2odd")
        it(0, pv="B", sm="B", qk="B", mask="B", nxt=Vg(0), name="m2even")
        k.label(LdB)
        it(1, pv="B", sm="B", nxt=Vg(1), newslot_next=True, dma=False, name="dBodd")
        it(0, pv="B", name="dBeven")
        k(self.diag.stamp())
        k("s_nop 3")
        self.epilogue('B')
        Lend = k.lab("fin")
        k(f"s_branch {Lend}")
        k.label(L0m)
        it(0, sm="BA", qk="BA", mask="A", nxt=Vg(0), name="t0m")
        k(f"s_branch {LdA}")
        k.label(LdA7)
        it(1, pv="BA", sm="BA", qk="B", mask="B", nxt=Vg(1), name="dA7odd")
        it(0, pv="BA", sm="B", qk="B", mask="B", nxt=Vg(0), name="dA7even")
        self.epilogue('A')
        k(f"s_branch {LdB}")
        self.emit_rare()
        k.label(Lend)

def build_p2(dg=False, kidx=1, thr=THR):
    k = Kern("p2_kernel")
    diag = Diag(k, kidx, dg)
    k(diag.stamp())
    k(f"s_cmp_ge_u32 s2, 256", f"s_cbranch_scc1 {k.name}_end")
    A = Att(k, Alloc('s', 4, 76), diag, thr)
    A.setup(); A.qproj(); k(diag.stamp()); A.attention()
    if dg:
        k(diag.stamp()); k("s_waitcnt vmcnt(0)", f"v_lshl_add_u32 v0, {A.wv}, 6, {A.lane}")
    diag.flush()
    k.label(k.name + "_end"); k("s_endpgm")
    return k, (k.name, 256, 256, 131072)

if __name__ == "__main__":
    from p1 import build_p1
    k1, l1 = build_p1(True, 0)
    for nm, thr in (("p2", THR), ("p2rare", 3.0)):
        k2, l2 = build_p2(True, 1, thr)
        check(k2)
        write_file(f"../dev/{nm}.s", "; p2 test", [l1, l2], [k1, k2])
```

```python
from common import *

def wimg_dma_addr(k, lane, dst, t0, t1, rowshift=10, rowmul=None):
    k(f"v_lshrrev_b32 {t0}, 5, {lane}", f"v_lshlrev_b32 {t1}, 1, {t0}", f"v_xor_b32 {t1}, {t1}, {lane}", f"v_and_b32 {t1}, 3, {t1}",
      f"v_lshlrev_b32 {dst[0]}, 4, {t1}",
      f"v_bfe_u32 {t1}, {lane}, 4, 1", f"v_lshl_add_u32 {dst[0]}, {t1}, 6, {dst[0]}",
      f"v_bfe_u32 {t1}, {lane}, 2, 2", f"v_lshl_add_u32 {t0}, {t0}, 2, {t1}")
    if rowmul is None:
        k(f"v_lshl_add_u32 {dst[0]}, {t0}, {rowshift}, {dst[0]}"); stride = 1 << rowshift
    else:
        k(f"v_mul_u32_u24 {t0}, {rowmul}, {t0}", f"v_add_u32 {dst[0]}, {dst[0]}, {t0}"); stride = rowmul
    for i in range(1, 4): k(f"v_add_u32 {dst[i]}, {(8*stride - 1024)*i}, {dst[0]}")

def wimg_rd_addr(k, lane, dst, t0, t1, order):
    sh = 11 if order == 'E8' else 10
    k(f"v_lshrrev_b32 {t0}, 5, {lane}", f"v_lshlrev_b32 {dst[0]}, {sh}, {t0}",
      f"v_bfe_u32 {t0}, {lane}, 4, 1", f"v_mul_u32_u24 {t0}, 544, {t0}", f"v_add_u32 {dst[0]}, {dst[0]}, {t0}",
      f"v_bfe_u32 {t0}, {lane}, 2, 2", f"v_lshl_add_u32 {dst[0]}, {t0}, 6, {dst[0]}",
      f"v_and_b32 {t0}, 3, {lane}", f"v_lshl_add_u32 {dst[0]}, {t0}, 3, {dst[0]}")
    return 1024 if order == 'E8' else 2048

def emit_p36(k, S, V, which, diag):
    p3 = which == 3
    NK = 32 if p3 else 7
    order = 'E8' if p3 else 'E16'
    XB, XT = (WS_CTX, 131072) if p3 else (WS_Y, 28672)
    D = 6; NS = 8; NX = 8
    wsrd, ws, res = S(4), S(4), S(4)
    load_srds(k, dict(wo=wsrd, ws=ws, x=res) if p3 else dict(wout=wsrd, ws=ws, out=res))
    srt, sct, sw, sX, sW, sM, st0, st1 = [S() for _ in range(8)]
    lane, wv, t0, t1 = V(), V(), V(), V()
    k(f"v_and_b32 {lane}, 63, v0", f"v_lshrrev_b32 {wv}, 6, v0",
      f"s_and_b32 {st0}, s2, 7", f"s_lshl_b32 {st0}, {st0}, 2", f"s_bfe_u32 {st1}, s2, 0x20003", f"s_add_u32 {srt}, {st0}, {st1}",
      f"s_lshr_b32 {sct}, s2, 5", f"v_readfirstlane_b32 {sw}, {wv}")
    vW = [V() for _ in range(4)]; vX = [V() for _ in range(4)]; rW = [V(), V()]
    wimg_dma_addr(k, lane, vW, t0, t1)
    for a_ in range(4):
        k(f"v_add_u32 {t0}, {a_}, {wv}", f"v_and_b32 {t0}, 3, {t0}", f"v_mul_u32_u24 {t0}, {XT}, {t0}", f"v_lshl_add_u32 {vX[a_]}, {lane}, 4, {t0}")
    k(f"s_mul_i32 {sX}, {srt}, {4*XT}", f"s_mul_i32 {st0}, {sw}, {NK*1024}", f"s_add_u32 {sX}, {sX}, {st0}", f"s_add_u32 {sX}, {sX}, {XB}",
      f"s_mul_i32 {sW}, {sw}, {NK*32768}", f"s_lshl_b32 {st0}, {sct}, 7", f"s_add_u32 {sW}, {sW}, {st0}",
      f"s_lshl_b32 {sM}, {sw}, 15")
    Xr = R('a', 0, 128)
    q = VmQ()
    def loads(i):
        L = [f"s_add_u32 m0, {sM}, {(i % NS)*4096}"]
        for a_ in range(4): L.append(f"buffer_load_dwordx4 {Xr.sub(16*(i % NX) + 4*a_, 4)}, {vX[a_]}, {ws}, {sX} offen offset:{1024*(i % 4)}")
        for z in range(4): L.append(f"buffer_load_dwordx4 {vW[z]}, {wsrd}, {sW} offen offset:{1024*z} lds")
        L.append(f"s_add_u32 {sW}, {sW}, 32768")
        if i % 4 == 3: L.append(f"s_add_u32 {sX}, {sX}, 4096")
        q.issue(i, 8)
        return L
    for i in range(min(D + 1, NK)): k(loads(i))
    ts = wimg_rd_addr(k, lane, rW, t0, t1, order)
    k(f"v_lshl_add_u32 {rW[0]}, {wv}, 15, {rW[0]}", f"v_xor_b32 {rW[1]}, 32, {rW[0]}")
    Wf = [V(16, 2), V(16, 2)]
    acc = V(64, 2)
    def A(a_, mt): return acc.sub(16*a_ + 4*mt, 4)
    def reads(i):
        return [f"ds_read_b64_tr_b16 {Wf[i & 1].sub(4*mt + 2*t, 2)}, {rW[mt & 1]} offset:{(i % NS)*4096 + ts*t + (mt >> 1)*256}" for mt in range(4) for t in range(2)]
    vR = V(); rs = V(8, 2); vH = V()
    k(f"v_and_b32 {t0}, 15, {lane}", f"v_lshl_add_u32 {t0}, {wv}, 4, {t0}", f"v_lshlrev_b32 {t0}, 10, {t0}",
      f"v_lshrrev_b32 {t1}, 4, {lane}", f"v_lshl_add_u32 {vR}, {t1}, 3, {t0}",
      f"v_lshlrev_b32 {t0}, 4, {lane}", f"v_lshl_add_u32 {vH}, {wv}, 14, {t0}",
      f"s_lshl_b32 {st0}, {srt}, 16", f"s_lshl_b32 {st1}, {sct}, 7", f"s_add_u32 {st0}, {st0}, {st1}",
      f"s_lshl_b32 {st1}, {sct}, 11", f"s_lshl_b32 {srt}, {srt}, 16", f"s_add_u32 {st1}, {st1}, {srt}", f"s_add_u32 {st1}, {st1}, {WS_H}")
    def resloads():
        if p3:
            q.issue("R", 4)
            return [f"buffer_load_dwordx2 {rs.sub(2*mt, 2)}, {vR}, {res}, {st0} offen offset:{32*mt}" for mt in range(4)]
        q.issue("R", 2)
        return [f"buffer_load_dwordx4 {rs.sub(4*P, 4)}, {vH}, {ws}, {st1} offen offset:{1024*P}" for P in range(2)]
    if p3:
        lab = k.lab("nz"); sz = S()
        k(f"s_cmp_ge_u32 s2, 224", f"s_cbranch_scc1 {lab}",
          f"v_mov_b32 {t0}, -1", f"v_lshlrev_b32 {t1}, 2, v0", f"s_lshl_b32 {sz}, s2, 10", f"s_add_u32 {sz}, {sz}, {WS_STZ}",
          f"buffer_store_dword {t0}, {t1}, {ws}, {sz} offen")
        k.label(lab)
    else:
        k(resloads())
    k(f"s_waitcnt vmcnt({q.need(0) - (0 if p3 else 0)})")
    k(diag.stamp())
    k(reads(0))
    for i in range(NK):
        mf = []
        for mt in range(4):
            for a_ in range(4):
                d = A(a_, mt)
                mf.append(f"{M16} {d}, {Wf[i & 1].sub(4*mt, 4)}, {Xr.sub(16*(i % NX) + 4*a_, 4)}, {0 if i == 0 else d}")
        sc = Sched(mf, 8)
        if i + 1 < NK:
            k(f"s_waitcnt vmcnt({q.need(i + 1)}) lgkmcnt(0)")
            rd = reads(i + 1)
            for z in range(8): sc.fix(z, rd[z])
        else: k("s_waitcnt lgkmcnt(0)")
        if i + 1 + D < NK:
            for z, x in enumerate(loads(i + 1 + D)): sc.fix(z + 4, x)
        elif p3 and i + 1 + D == NK:
            for z, x in enumerate(resloads()): sc.fix(z + 8, x)
        k(sc.out())
    k(diag.stamp())
    vw_, vr_ = V(), V(); ib = V(48, 2)
    k("s_barrier")
    for a_ in range(1, 4):
        k(f"v_add_u32 {t0}, {a_}, {wv}", f"v_and_b32 {t0}, 3, {t0}", f"v_lshlrev_b32 {t0}, 14, {t0}", f"v_lshl_add_u32 {vw_}, {lane}, 4, {t0}")
        if a_ == 1: k("s_nop 3")
        for mt in range(4): k(f"ds_write_b128 {vw_}, {A(a_, mt)} offset:{a_*4096 + mt*1024}")
    k("s_waitcnt lgkmcnt(0)", "s_barrier")
    for a_ in range(1, 4):
        for mt in range(4): k(f"ds_read_b128 {ib.sub(16*(a_-1) + 4*mt, 4)}, {vH} offset:{a_*4096 + mt*1024}")
    k(f"s_waitcnt vmcnt({q.need('R')})")
    rf = V(16)
    for z in range(8): k(f"v_lshlrev_b32 {rf[2*z]}, 16, {rs[z]}", f"v_and_b32 {rf[2*z+1]}, 0xffff0000, {rs[z]}")
    for z in range(16): k(f"v_add_f32 {acc[z]}, {acc[z]}, {rf[z]}")
    for a_ in range(3):
        k(f"s_waitcnt lgkmcnt({8 - 4*a_})")
        for z in range(16): k(f"v_add_f32 {acc[z]}, {acc[z]}, {ib[16*a_ + z]}")
    for z in range(8): k(f"v_cvt_pk_bf16_f32 {rs[z]}, {acc[2*z]}, {acc[2*z+1]}")
    if p3:
        for P in range(2): k(f"buffer_store_dwordx4 {rs.sub(4*P, 4)}, {vH}, {ws}, {st1} offen offset:{1024*P}")
        sm = V(2, 2); u = V(2, 2)
        for z in range(8): k(f"v_lshlrev_b32 {rf[2*z]}, 16, {rs[z]}", f"v_and_b32 {rf[2*z+1]}, 0xffff0000, {rs[z]}")
        k(f"v_add_f32 {sm[0]}, {rf[0]}, {rf[1]}", f"v_mul_f32 {sm[1]}, {rf[0]}, {rf[0]}", f"v_fmac_f32 {sm[1]}, {rf[1]}, {rf[1]}")
        for z in range(2, 16): k(f"v_add_f32 {sm[0]}, {sm[0]}, {rf[z]}", f"v_fmac_f32 {sm[1]}, {rf[z]}, {rf[z]}")
        for sw_ in ("v_permlane16_swap_b32", "v_permlane32_swap_b32"):
            k(f"v_mov_b32 {u[0]}, {sm[0]}", f"v_mov_b32 {u[1]}, {sm[1]}", "s_nop 0", f"{sw_} {u[0]}, {sm[0]}", f"{sw_} {u[1]}, {sm[1]}",
              f"v_add_f32 {sm[0]}, {sm[0]}, {u[0]}", f"v_add_f32 {sm[1]}, {sm[1]}, {u[1]}")
        k(f"v_lshl_add_u32 {t0}, {wv}, 4, {lane}", f"v_lshlrev_b32 {t0}, 6, {t0}",
          f"s_lshr_b32 {st0}, {srt}, 4", f"s_lshl_b32 {sct}, {sct}, 3", f"s_add_u32 {st0}, {st0}, {sct}", f"s_add_u32 {st0}, {st0}, {WS_STH}",
          "s_mov_b64 exec, 0xffff", f"buffer_store_dwordx2 {sm}, {t0}, {ws}, {st0} offen", "s_mov_b64 exec, -1")
    else:
        for mt in range(4): k(f"buffer_store_dwordx2 {rs.sub(2*mt, 2)}, {vR}, {res}, {st0} offen offset:{32*mt}")

def build_p36(which, dg=False, kidx=0):
    k = Kern(f"p{which}_kernel")
    diag = Diag(k, kidx, dg)
    k(diag.stamp())
    k(f"s_cmp_ge_u32 s2, 256", f"s_cbranch_scc1 {k.name}_end")
    emit_p36(k, Alloc('s', 4, 76), Alloc('v', 1, 254), which, diag)
    if dg: k("s_waitcnt vmcnt(0)")
    diag.flush()
    k.label(k.name + "_end"); k("s_endpgm")
    k.diag = diag
    return k, (k.name, 256, 256, 131072)

if __name__ == "__main__":
    for w in (3, 6):
        k, l = build_p36(w, True, 2); check(k)
```

```python
from common import *
from p36 import wimg_dma_addr, wimg_rd_addr
import math
C0 = 2*math.sqrt(2/math.pi)*math.log2(math.e)
C1 = C0*0.044715

def gelu_stream(vals, tm, sc0, vc1):
    L = []
    for b in range(0, len(vals), 4):
        g = vals[b:b+4]; n = len(g)
        for z in range(n): L.append(f"v_mul_f32 {tm[z]}, {g[z]}, {g[z]}")
        for z in range(n): L.append(f"v_fma_f32 {tm[z]}, {tm[z]}, {vc1}, {sc0}")
        for z in range(n): L.append(f"v_mul_f32 {tm[z]}, {tm[z]}, {g[z]}")
        for z in range(n): L.append(f"v_exp_f32 {tm[z]}, {tm[z]}")
        for z in range(n): L.append(f"v_add_f32 {tm[z]}, 1.0, {tm[z]}")
        for z in range(n): L.append(f"v_rcp_f32 {tm[z]}, {tm[z]}")
        for z in range(n): L.append(f"v_mul_f32 {g[z]}, {g[z]}, {tm[z]}")
    return L

def finish_stats(s1, s2, n):
    return [f"v_mul_f32 {s1}, {f2u(1/n)}, {s1}", f"v_mul_f32 {s2}, {f2u(1/n)}, {s2}",
            f"v_fma_f32 {s2}, -{s1}, {s1}, {s2}", f"v_max_f32 {s2}, 0, {s2}", f"v_add_f32 {s2}, {f2u(1e-5)}, {s2}",
            f"v_rsq_f32 {s2}, {s2}", "s_nop 0", f"v_mul_f32 {s1}, {s1}, {s2}",
            f"v_swap_b32 {s1}, {s2}", f"v_sub_f32 {s2}, 0, {s2}"]

def emit_p4(k, S, V, diag):
    win, ws = S(4), S(4)
    load_srds(k, dict(win=win, ws=ws))
    srb, scb, sw, sW, sH, sM, st0, st1, sc0, scnt = [S() for _ in range(10)]
    lane, wv, t0, t1 = V(), V(), V(), V()
    k(f"v_and_b32 {lane}, 63, v0", f"v_lshrrev_b32 {wv}, 6, v0",
      f"s_and_b32 {st0}, s2, 7", f"s_lshl_b32 {st0}, {st0}, 1", f"s_bfe_u32 {st1}, s2, 0x10003", f"s_add_u32 {srb}, {st0}, {st1}",
      f"s_lshr_b32 {scb}, s2, 4", f"v_readfirstlane_b32 {sw}, {wv}")
    vW = [V() for _ in range(4)]; rW = [V(), V(), V(), V()]; vH = [V(), V()]
    wimg_dma_addr(k, lane, vW, t0, t1, rowmul=3584)
    k(f"v_bfe_u32 {t0}, {lane}, 3, 1", f"v_lshlrev_b32 {t0}, 14, {t0}",
      f"v_bfe_u32 {t1}, {lane}, 2, 1", f"v_lshl_add_u32 {t0}, {t1}, 7, {t0}",
      f"v_and_b32 {t1}, 3, {lane}", f"v_lshl_add_u32 {t0}, {t1}, 4, {t0}",
      f"v_lshrrev_b32 {t1}, 4, {lane}", f"v_lshl_add_u32 {vH[0]}, {t1}, 8, {t0}", f"v_add_u32 {vH[1]}, 64, {vH[0]}")
    k(f"s_mul_i32 {sW}, {sw}, {32*3584}", f"s_lshl_b32 {st0}, {scb}, 7", f"s_add_u32 {sW}, {sW}, {st0}",
      f"s_lshl_b32 {sM}, {sw}, 12",
      f"s_lshl_b32 {st0}, {srb}, 2", f"s_add_u32 {st0}, {st0}, {sw}",
      f"s_lshl_b32 {sH}, {st0}, 15", f"s_add_u32 {sH}, {sH}, {WS_H}")
    Hf = R('a', 0, 128)
    q = VmQ()
    def wdma(part, n):
        off = n*4*32*3584 + (1792 if part == 0 else 0)
        L = [f"s_add_u32 m0, {sM}, {part*65536 + n*16384}", f"s_add_u32 {st1}, {sW}, {off}"]
        L += [f"buffer_load_dwordx4 {vW[z]}, {win}, {st1} offen offset:{1024*z} lds" for z in range(4)]
        q.issue(("W", part, n), 4); return L
    def hld(n):
        L = []
        for i in range(4*n, 4*n + 4):
            for u in range(2): L.append(f"buffer_load_dwordx4 {Hf.sub(8*i + 4*u, 4)}, {vH[u]}, {ws}, {sH} offen offset:{1024*(i % 4)}")
        L.append(f"s_add_u32 {sH}, {sH}, 4096")
        q.issue(("H", n), 8); return L
    sp = V(8, 2); vS = V()
    k(f"v_and_b32 {t0}, 31, {lane}", f"v_lshlrev_b32 {t0}, 6, {t0}", f"v_lshrrev_b32 {t1}, 5, {lane}", f"v_lshl_add_u32 {vS}, {t1}, 5, {t0}",
      f"s_lshl_b32 {st0}, {st0}, 11", f"s_add_u32 {st0}, {st0}, {WS_STH}")
    k(wdma(0, 0), hld(0))
    k(f"buffer_load_dwordx4 {sp[0:4]}, {vS}, {ws}, {st0} offen", f"buffer_load_dwordx4 {sp[4:8]}, {vS}, {ws}, {st0} offen offset:16"); q.issue("S", 2)
    for n in range(1, 4): k(wdma(0, n), hld(n))
    k(wdma(1, 0), wdma(1, 1), wdma(1, 2))
    ts = wimg_rd_addr(k, lane, rW, t0, t1, 'E16')
    k(f"v_xor_b32 {rW[1]}, 32, {rW[0]}", f"v_add_u32 {rW[2]}, 0x10000, {rW[0]}", f"v_add_u32 {rW[3]}, 0x10000, {rW[1]}")
    ones = V(4, 2); vc1 = V()
    for z in range(4): k(f"v_mov_b32 {ones[z]}, 0x3f803f80")
    k(f"s_mov_b32 {sc0}, {f2u(-C0)}", f"v_mov_b32 {vc1}, {f2u(-C1)}")
    Wf = [V(16, 2), V(16, 2)]
    acc = [V(48, 2), V(48, 2)]
    def A(part, u, mt): return acc[part].sub(16*u + 4*mt, 4)
    def reads(j):
        part, i = j >> 4, j & 15
        return [f"ds_read_b64_tr_b16 {Wf[j & 1].sub(4*mt + 2*t, 2)}, {rW[2*part + (mt & 1)]} offset:{i*4096 + ts*t + (mt >> 1)*256}" for mt in range(4) for t in range(2)]
    LS = 131072
    vSw, vS2, vS1 = V(), V(), V()
    k(f"v_and_b32 {t0}, 31, {lane}", f"v_lshlrev_b32 {t0}, 3, {t0}", f"v_lshl_add_u32 {t1}, {wv}, 8, {LS % 64}", f"v_add_u32 {t1}, {LS}, {t1}",
      f"v_add_u32 {vSw}, {t0}, {t1}",
      f"v_lshrrev_b32 {t0}, 4, {lane}", f"v_lshl_add_u32 {vS2}, {t0}, 6, {t1}",
      f"v_bfe_u32 {t0}, {lane}, 2, 2", f"v_lshl_add_u32 {t1}, {t0}, 6, {t1}", f"v_and_b32 {t0}, 3, {lane}", f"v_lshl_add_u32 {vS1}, {t0}, 3, {t1}")
    st2 = V(16, 2); st1r = V(4, 2); sm = V(2, 2); u_ = V(2, 2); tm = V(8)
    def half_reduce():
        return [f"v_mov_b32 {u_[0]}, {sm[0]}", f"v_mov_b32 {u_[1]}, {sm[1]}", "s_nop 0", f"v_permlane32_swap_b32 {u_[0]}, {sm[0]}", f"v_permlane32_swap_b32 {u_[1]}, {sm[1]}",
                f"v_add_f32 {sm[0]}, {sm[0]}, {u_[0]}", f"v_add_f32 {sm[1]}, {sm[1]}, {u_[1]}"]
    k(f"s_waitcnt vmcnt({q.need(('W', 0, 0), ('H', 0), 'S')})", "s_barrier")
    k(diag.stamp())
    k(reads(0))
    k(wdma(1, 3))
    k(f"v_add_f32 {sm[0]}, {sp[0]}, {sp[2]}", f"v_add_f32 {sm[1]}, {sp[1]}, {sp[3]}", f"v_add_f32 {u_[0]}, {sp[4]}, {sp[6]}", f"v_add_f32 {u_[1]}, {sp[5]}, {sp[7]}",
      f"v_add_f32 {sm[0]}, {sm[0]}, {u_[0]}", f"v_add_f32 {sm[1]}, {sm[1]}, {u_[1]}", half_reduce(), finish_stats(sm[0], sm[1], 512),
      f"ds_write_b64 {vSw}, {sm}")
    rd_st2 = [f"ds_read_b128 {st2.sub(4*z, 4)}, {vS2} offset:{16*z}" for z in range(4)]
    k(rd_st2, [f"ds_read_b64 {st1r.sub(2*u, 2)}, {vS1} offset:{32*u}" for u in range(2)])
    def gemm(part, filler=None):
        fl = list(filler or []); per = (len(fl) + 15) // 16
        for i in range(16):
            j = 16*part + i
            mf = []
            for mt in range(4):
                for u in range(3):
                    d = A(part, u, mt); x = ones if u == 2 else Hf.sub(8*i + 4*u, 4); w_ = Wf[j & 1].sub(4*mt, 4)
                    c = 0 if i == 0 else d
                    mf.append(f"{M16} {d}, {x}, {w_}, {c}" if part == 0 else f"{M16} {d}, {w_}, {x}, {c}")
            sc = Sched(mf, 8)
            if j < 31 and (i & 3) == 3:
                nj = j + 1; tags = [("W", nj >> 4, (nj & 15) >> 2)] + ([("H", (nj & 15) >> 2)] if nj < 16 else [])
                k(f"s_waitcnt vmcnt({q.need(*tags)}) lgkmcnt(0)", "s_barrier")
            else: k("s_waitcnt lgkmcnt(0)")
            if j < 31:
                for z, x in enumerate(reads(j + 1)): sc.fix(z, x)
            if fl:
                sc.flow([(x, 0) for x in fl[:per]]); fl = fl[per:]
            k(sc.out())
    gemm(0)
    k(diag.stamp())
    k("s_nop 7")
    z2 = []
    for u in range(2):
        for mt in range(4):
            for e in range(4):
                r = A(0, u, mt)[e]; row = 4*u + e
                k(f"v_mul_f32 {r}, {r}, {st2[2*row]}", f"v_fmac_f32 {r}, {st2[2*row+1]}, {A(0, 2, mt)[0]}")
                z2.append(r)
    k(gelu_stream(z2, tm, sc0, vc1))
    ps = A(0, 2, 0); ps = R('v', ps.b, 16)
    for u in range(2):
        for e in range(4):
            row = 4*u + e; a0, a1, a2, a3 = [A(0, u, mt)[e] for mt in range(4)]
            k(f"v_add_f32 {ps[2*row]}, {a0}, {a1}", f"v_mul_f32 {ps[2*row+1]}, {a0}, {a0}", f"v_add_f32 {tm[0]}, {a2}, {a3}",
              f"v_fmac_f32 {ps[2*row+1]}, {a1}, {a1}", f"v_add_f32 {ps[2*row]}, {ps[2*row]}, {tm[0]}",
              f"v_fmac_f32 {ps[2*row+1]}, {a2}, {a2}", f"v_fmac_f32 {ps[2*row+1]}, {a3}, {a3}")
    for ror in (8, 4, 2, 1):
        for z in range(16): k(f"v_add_f32_dpp {ps[z]}, {ps[z]}, {ps[z]} row_ror:{ror} row_mask:0xf bank_mask:0xf")
    sZ = S()
    k(f"v_lshrrev_b32 {t0}, 4, {lane}", f"v_lshlrev_b32 {t0}, 6, {t0}", f"v_lshl_add_u32 {t0}, {wv}, 8, {t0}",
      f"s_mul_i32 {sZ}, {srb}, {14*1024}", f"s_add_u32 {sZ}, {sZ}, {WS_STZ}", f"s_lshl_b32 {st0}, {scb}, 10", f"s_add_u32 {st0}, {st0}, {sZ}",
      "s_mov_b32 exec_lo, 0x00010001", "s_mov_b32 exec_hi, 0x00010001")
    for z in range(4): k(f"buffer_store_dwordx4 {ps.sub(4*z, 4)}, {t0}, {ws}, {st0} offen offset:{16*z} sc1")
    q.issue("Z", 4)
    k("s_mov_b64 exec, -1")
    k(diag.stamp())
    gemm(1)
    k("s_nop 7")
    z1 = []
    for u in range(2):
        for mt in range(4):
            for e in range(4):
                r = A(1, u, mt)[e]
                k(f"v_mul_f32 {r}, {r}, {st1r[2*u]}", f"v_fmac_f32 {r}, {st1r[2*u+1]}, {A(1, 2, mt)[e]}")
                z1.append(r)
    pl = V(14, 2); vP = V()
    k(f"v_and_b32 {t0}, 31, {lane}", f"v_lshlrev_b32 {t0}, 3, {t0}", f"v_lshl_add_u32 {t0}, {wv}, 8, {t0}",
      f"v_lshrrev_b32 {t1}, 5, {lane}", f"v_mul_u32_u24 {t1}, 7168, {t1}", f"v_add_u32 {vP}, {t0}, {t1}", f"s_add_u32 {st0}, {sZ}, 4096")
    def poll():
        return [f"buffer_load_dwordx2 {pl.sub(2*z, 2)}, {vP}, {ws}, {sZ if z < 4 else st0} offen offset:{1024*(z % 4)} sc1" for z in range(7)]
    k(poll())
    k(gelu_stream(z1, tm, sc0, vc1))
    vZ = V(); o = Wf[0]
    k(f"v_bfe_u32 {t0}, {lane}, 3, 1", f"v_mul_u32_u24 {t0}, {28672 - 16384}, {t0}", f"v_add_u32 {vZ}, {t0}, {vH[0]}",
      f"s_lshl_b32 {st1}, {srb}, 2", f"s_add_u32 {st1}, {st1}, {sw}", f"s_mul_i32 {sH}, {st1}, {2*28672}", f"s_lshl_b32 {sW}, {scb}, 11",
      f"s_add_u32 {sH}, {sH}, {sW}", f"s_add_u32 {sH}, {sH}, {WS_Z1}")
    for u in range(2):
        for P in range(2):
            oo = o.sub(8*u + 4*P, 4)
            for z in range(4):
                r = A(1, u, 2*P + (z >> 1))
                k(f"v_cvt_pk_bf16_f32 {oo[z]}, {r[2*(z & 1)]}, {r[2*(z & 1) + 1]}")
    lp, ld = k.lab("poll"), k.lab("got")
    k(f"s_mov_b32 {scnt}, 0x40000")
    k.label(lp)
    k("s_waitcnt vmcnt(0)", f"v_max_u32 {t0}, {pl[0]}, {pl[1]}")
    for z in range(1, 7): k(f"v_max3_u32 {t0}, {t0}, {pl[2*z]}, {pl[2*z+1]}")
    k(f"v_cmp_eq_u32 vcc, -1, {t0}", f"s_cbranch_vccz {ld}", f"s_sub_u32 {scnt}, {scnt}, 1", f"s_cbranch_scc1 {ld}", poll(), f"s_branch {lp}")
    k.label(ld)
    for u in range(2):
        for P in range(2): k(f"buffer_store_dwordx4 {o.sub(8*u + 4*P, 4)}, {vZ}, {ws}, {sH} offen offset:{1024*P + 64*u}")
    k(diag.stamp())
    k(f"v_add_f32 {sm[0]}, {pl[0]}, {pl[2]}", f"v_add_f32 {sm[1]}, {pl[1]}, {pl[3]}")
    for z in range(2, 7): k(f"v_add_f32 {sm[0]}, {sm[0]}, {pl[2*z]}", f"v_add_f32 {sm[1]}, {sm[1]}, {pl[2*z+1]}")
    k(half_reduce(), finish_stats(sm[0], sm[1], 896), f"ds_write_b64 {vSw}, {sm}", rd_st2)
    k(f"v_lshlrev_b32 {t0}, 4, {lane}", f"s_lshl_b32 {st0}, {scb}, 18", f"s_lshl_b32 {st1}, {st1}, 10", f"s_add_u32 {st0}, {st0}, {st1}",
      f"s_add_u32 {st0}, {st0}, {WS_Z2}", "s_waitcnt lgkmcnt(0)")
    o = Wf[1]
    for mt in range(4):
        for u in range(2):
            for e in range(4):
                r = A(0, u, mt)[e]; row = 4*u + e
                k(f"v_fma_f32 {r}, {r}, {st2[2*row]}, {st2[2*row+1]}")
        oo = o.sub(4*mt, 4)
        for z in range(4):
            r = A(0, z >> 1, mt)
            k(f"v_cvt_pk_bf16_f32 {oo[z]}, {r[2*(z & 1)]}, {r[2*(z & 1) + 1]}")
        k(f"buffer_store_dwordx4 {oo}, {t0}, {ws}, {st0} offen")
        if mt < 3: k(f"s_add_u32 {st0}, {st0}, 65536")

def build_p4(dg=False, kidx=0):
    k = Kern("p4_kernel")
    diag = Diag(k, kidx, dg)
    k(diag.stamp())
    k(f"s_cmp_ge_u32 s2, 224", f"s_cbranch_scc1 {k.name}_end")
    emit_p4(k, Alloc('s', 4, 76), Alloc('v', 1, 254), diag)
    if dg: k("s_waitcnt vmcnt(0)")
    diag.flush()
    k.label(k.name + "_end"); k("s_endpgm")
    k.diag = diag
    return k, (k.name, 224, 256, 131072 + 1024)

if __name__ == "__main__":
    k, l = build_p4(True, 3); check(k)
```

```python
from common import *

def emit_p5(k, S, V, diag):
    wsp, ws, bs = S(4), S(4), S(4)
    load_srds(k, dict(wsp=wsp, ws=ws, bsp=bs))
    srt, scb, sw, sZ, sW, sM, st0, st1 = [S() for _ in range(8)]
    lane, wv, t0, t1, t2 = V(), V(), V(), V(), V()
    k(f"v_and_b32 {lane}, 63, v0", f"v_lshrrev_b32 {wv}, 6, v0",
      f"s_bfe_u32 {st0}, s2, 0x20001", f"s_lshl_b32 {st0}, {st0}, 3", f"s_bfe_u32 {st1}, s2, 0x30003", f"s_add_u32 {srt}, {st0}, {st1}",
      f"s_and_b32 {st0}, s2, 1", f"s_lshl_b32 {st0}, {st0}, 2", f"s_lshr_b32 {st1}, s2, 6", f"s_add_u32 {scb}, {st0}, {st1}",
      f"v_readfirstlane_b32 {sw}, {wv}")
    vW = [V() for _ in range(8)]
    k(f"v_lshrrev_b32 {t0}, 3, {lane}", f"v_lshrrev_b32 {t1}, 4, {lane}", f"v_xor_b32 {t1}, {t1}, {lane}", f"v_and_b32 {t1}, 7, {t1}",
      f"v_lshlrev_b32 {t1}, 4, {t1}", f"v_lshl_add_u32 {t0}, {t0}, 12, {t1}", f"v_add_u32 {t0}, 4096, {t0}", f"v_xor_b32 {t1}, 64, {t0}")
    for m in range(8):
        if m % 2 == 0: k(f"v_add_u32 {t2}, {m >> 1}, {wv}", f"v_and_b32 {t2}, 3, {t2}")
        k(f"v_lshl_add_u32 {vW[m]}, {t2}, 16, {t1 if m & 1 else t0}")
        c = (m & 1)*32768 - 1024*(m % 4)
        if c > 0: k(f"v_add_u32 {vW[m]}, {c}, {vW[m]}")
        elif c < 0: k(f"v_subrev_u32 {vW[m]}, {-c}, {vW[m]}")
    k(f"s_sub_u32 {wsp[0]}, {wsp[0]}, 4096", f"s_subb_u32 {wsp[1]}, {wsp[1]}, 0", f"s_mov_b32 {wsp[2]}, {SZ['wsp'] + 4096}")
    vZ = [V() for _ in range(7)]
    k(f"v_lshlrev_b32 {vZ[0]}, 4, {lane}")
    for f in range(1, 7): k(f"v_add_u32 {vZ[f]}, {65536*f}, {vZ[0]}")
    k(f"s_lshl_b32 {sW}, {srt}, 18", f"s_lshl_b32 {st0}, {sw}, 10", f"s_add_u32 {sW}, {sW}, {st0}",
      f"s_mul_i32 {sZ}, {scb}, {7*65536}", f"s_lshl_b32 {st0}, {sw}, 14", f"s_add_u32 {sZ}, {sZ}, {st0}", f"s_add_u32 {sZ}, {sZ}, {WS_Z2}",
      f"s_lshl_b32 {sM}, {sw}, 15")
    NZ = 6; DZ = 4
    Zr = R('a', 0, 28*NZ)
    q = VmQ()
    def wdma(n, half):
        L = [f"s_add_u32 m0, {sM}, {(n % 4)*8192 + half*4096}"]
        L += [f"buffer_load_dwordx4 {vW[4*half + z]}, {wsp}, {sW} offen offset:{1024*z} lds" for z in range(4)]
        if half: L.append(f"s_add_u32 {sW}, {sW}, 128")
        q.issue(("W", n), 4); return L
    def zld(i):
        L = [f"buffer_load_dwordx4 {Zr.sub(28*(i % NZ) + 4*f, 4)}, {vZ[f]}, {ws}, {sZ} offen offset:{1024*(i % 4)}" for f in range(7)]
        if i % 4 == 3: L.append(f"s_add_u32 {sZ}, {sZ}, 4096")
        q.issue(("Z", i), 7); return L
    def nopm0(L): return [L[0], "s_nop 0"] + L[1:]
    k(nopm0(wdma(0, 0)), nopm0(wdma(0, 1)), zld(0), zld(1), nopm0(wdma(1, 0)), nopm0(wdma(1, 1)), zld(2), zld(3), nopm0(wdma(2, 0)), nopm0(wdma(2, 1)))
    rC = [V(), V()]
    k(f"v_and_b32 {t0}, 15, {lane}", f"v_lshrrev_b32 {t1}, 1, {t0}", f"v_lshrrev_b32 {t2}, 4, {lane}",
      f"v_xor_b32 {t1}, {t1}, {t2}", f"v_lshlrev_b32 {t1}, 4, {t1}", f"v_lshl_add_u32 {t0}, {t0}, 7, {t1}",
      f"v_lshl_add_u32 {rC[0]}, {wv}, 15, {t0}", f"v_xor_b32 {rC[1]}, 64, {rC[0]}")
    Wf = [R('a', 176, 16), R('a', 192, 16)]
    acc = V(112, 2)
    def A(a_, f): return acc.sub(28*a_ + 4*f, 4)
    def reads(i): return [f"ds_read_b128 {Wf[i & 1].sub(4*a_, 4)}, {rC[i & 1]} offset:{((i >> 1) % 4)*8192 + a_*2048}" for a_ in range(4)]
    z1 = V(14, 2); bb = V(); vY = [V(), V()]; vB = V()
    k(f"s_and_b32 {st1}, {scb}, 1", f"s_lshl_b32 {st0}, {st1}, 3", f"v_add_u32 {vY[0]}, {st0}, {vZ[0]}",
      f"s_mul_i32 {st0}, {st1}, 1016", f"s_add_u32 {st0}, {st0}, 8", f"v_add_u32 {vY[1]}, {st0}, {vZ[0]}",
      f"s_lshl_b32 {st0}, {srt}, 2", f"s_add_u32 {st0}, {st0}, {sw}",
      f"v_and_b32 {t0}, 15, {lane}", f"v_lshlrev_b32 {vB}, 1, {t0}", f"s_lshl_b32 {srt}, {st0}, 5",
      f"s_mul_i32 {st0}, {st0}, 28672", f"s_mul_i32 {st1}, {scb}, 7", f"s_lshr_b32 {st1}, {st1}, 1", f"s_lshl_b32 {st1}, {st1}, 10",
      f"s_add_u32 {st0}, {st0}, {st1}", f"s_add_u32 {st1}, {st0}, {WS_Y}", f"s_add_u32 {st0}, {st0}, {WS_Z1}")
    def eld():
        q.issue("E", 8)
        return [f"buffer_load_dwordx2 {z1.sub(2*f, 2)}, {vY[f & 1]}, {ws}, {st0} offen offset:{1024*(f >> 1)}" for f in range(7)] + \
               [f"buffer_load_ushort {bb}, {vB}, {bs}, {srt} offen"]
    k(f"s_waitcnt vmcnt({q.need(('W', 0))})")
    k(diag.stamp())
    k(reads(0))
    for i in range(16):
        mf = []
        for f in range(7):
            for a_ in range(4):
                d = A(a_, f)
                mf.append(f"{M16} {d}, {Zr.sub(28*(i % NZ) + 4*f, 4)}, {Wf[i & 1].sub(4*a_, 4)}, {0 if i == 0 else d}")
        sc = Sched(mf, 8)
        tags = [("Z", i)] + ([("W", (i + 1) >> 1)] if i < 15 else [])
        k(f"s_waitcnt vmcnt({q.need(*tags)}) lgkmcnt(0)")
        if i < 15:
            for z, x in enumerate(reads(i + 1)): sc.fix(z, x)
        L = []
        if i + DZ < 16: L += zld(i + DZ)
        n = (i >> 1) + 3
        if n < 8: L += wdma(n, i & 1)
        if i == 12: L += eld()
        for z, x in enumerate(L): sc.fix(4 + z, x)
        k(sc.out())
    k(diag.stamp())
    vw_, vr_ = V(), V(); ib = V(84, 2)
    k("s_barrier")
    for a_ in range(1, 4):
        k(f"v_add_u32 {t0}, {a_}, {wv}", f"v_and_b32 {t0}, 3, {t0}", f"v_lshlrev_b32 {t0}, 15, {t0}", f"v_lshl_add_u32 {vw_}, {lane}, 4, {t0}")
        if a_ == 1: k("s_nop 3")
        for f in range(7): k(f"ds_write_b128 {vw_}, {A(a_, f)} offset:{a_*8192 + f*1024}")
    k(f"v_lshl_add_u32 {vr_}, {wv}, 15, {vZ[0]}", "s_waitcnt lgkmcnt(0)", "s_barrier")
    for a_ in range(1, 3):
        for f in range(7): k(f"ds_read_b128 {ib.sub(28*(a_-1) + 4*f, 4)}, {vr_} offset:{a_*8192 + f*1024}")
    k(f"s_waitcnt vmcnt({q.need('E')})", f"v_lshlrev_b32 {bb}, 16, {bb}")
    for z in range(28): k(f"v_add_f32 {acc[z]}, {acc[z]}, {bb}")
    k("s_waitcnt lgkmcnt(7)")
    for f in range(7): k(f"ds_read_b128 {ib.sub(56 + 4*f, 4)}, {vr_} offset:{3*8192 + f*1024}")
    for a_ in range(3):
        if a_: k(f"s_waitcnt lgkmcnt({14 - 7*a_})")
        for z in range(28): k(f"v_add_f32 {acc[z]}, {acc[z]}, {ib[28*a_ + z]}")
    for z in range(14):
        k(f"v_lshlrev_b32 {t0}, 16, {z1[z]}", f"v_and_b32 {t1}, 0xffff0000, {z1[z]}",
          f"v_mul_f32 {t0}, {t0}, {acc[2*z]}", f"v_mul_f32 {t1}, {t1}, {acc[2*z+1]}", f"v_cvt_pk_bf16_f32 {z1[z]}, {t0}, {t1}")
        if z & 1:
            f = z >> 1
            k(f"buffer_store_dwordx2 {z1.sub(2*f, 2)}, {vY[f & 1]}, {ws}, {st1} offen offset:{1024*(f >> 1)}")

def build_p5(dg=False, kidx=0):
    k = Kern("p5_kernel")
    diag = Diag(k, kidx, dg)
    k(diag.stamp())
    k(f"s_cmp_ge_u32 s2, 256", f"s_cbranch_scc1 {k.name}_end")
    emit_p5(k, Alloc('s', 4, 76), Alloc('v', 1, 256), diag)
    if dg: k("s_waitcnt vmcnt(0)")
    diag.flush()
    k.label(k.name + "_end"); k("s_endpgm")
    return k, (k.name, 256, 256, 131072)

if __name__ == "__main__":
    k, l = build_p5(True, 4); check(k)
```

```python
import sys
from common import *
from p1 import build_p1
from p2 import build_p2
from p36 import build_p36
from p4 import build_p4
from p5 import build_p5
HDR = open("sequential_preLN__compressed_kv_cla__mixer_gmlp__prompt.s.ref").read().split("; Override launch")[0]
def build(path, dg):
    ks = [build_p1(dg, 0), build_p2(dg, 1), build_p36(3, dg, 2), build_p4(dg, 3), build_p5(dg, 4), build_p36(6, dg, 5)]
    bad = 0
    for k, l in ks: bad += len(check(k))
    assert bad == 0
    write_file(path, HDR, [l for k, l in ks], [k for k, l in ks])
if __name__ == "__main__":
    build("../dev/full_dg.s", True)
    build("../cdna_kernels/sequential_preLN__compressed_kv_cla__mixer_gmlp__prompt.s", False)
```

```python
from asmlib import *
WS_XN   = 0x0000000
WS_KV   = 0x0400000
WS_CTX  = 0x2400000
WS_H    = 0x3400000
WS_Z1   = 0x3800000
WS_Z2   = 0x3C00000
WS_Y    = 0x4000000
WS_FLAG = 0x4400000
WS_STAMP= 0xF000000
WS_SIZE = 0x10000000
ARG = dict(x=0, ckv=8, wq=16, wuk=24, wuv=32, wo=40, win=56, wsp=64, bsp=72, wout=80, out=88, dbg=96, ws=104)
SZ = dict(x=2048*512*2, ckv=2048*512*2, wq=512*4096*2, wuk=512*4096*2, wuv=512*4096*2, wo=4096*512*2,
          win=512*1792*2, wsp=2048*2048*2, bsp=2048*2, wout=896*512*2, out=2048*512*2, dbg=256, ws=WS_SIZE)
M16 = "v_mfma_f32_16x16x32_bf16"
M32 = "v_mfma_f32_32x32x16_bf16"

def load_srds(k, srds):
    for n, r in srds.items():
        k(f"s_load_dwordx2 {r[0:2]}, s[0:1], {ARG[n]}")
    for n, r in srds.items():
        k(f"s_mov_b32 {r[2]}, {SZ[n]}", f"s_mov_b32 {r[3]}, 0x20000")
    k("s_waitcnt lgkmcnt(0)")

def f2u(x):
    import struct
    return "0x%08x" % struct.unpack("<I", struct.pack("<f", x))[0]

class Slots:
    def __init__(self, n): self.n = n; self.s = [[] for _ in range(n)]
    def put(self, i, *ins):
        for x in ins:
            if isinstance(x, (list, tuple)): self.put(i, *x)
            else: self.s[i].append(x)
    def spread(self, ins, lo, hi):
        m = len(ins)
        for q, x in enumerate(ins):
            self.put(lo + (q * (hi - lo)) // m, x)
    def weave(self, mf, sort=True):
        assert len(mf) == self.n
        out = []
        for i, m in enumerate(mf):
            out.append(m)
            f = self.s[i]
            if sort: f = [x for x in f if not is_valu(x)] + [x for x in f if is_valu(x)]
            out.extend(f)
        return out

class Diag:
    def __init__(self, k, kidx, on=True): self.k, self.kidx, self.on, self.n, self.names = k, kidx, on, 0, []
    def stamp(self, name="", idx=None):
        if not self.on: return []
        if idx is None:
            idx = self.n; self.n += 1; self.names.append(name or str(idx)); assert self.n <= 32
        return ["s_memrealtime s[96:97]", "s_memtime s[98:99]", "s_waitcnt lgkmcnt(0)",
                f"v_writelane_b32 v254, s96, {idx}", f"v_writelane_b32 v255, s98, {idx}"]
    def flush(self):
        if not self.on: return
        k = self.k
        k(self.stamp("end"))
        k("s_load_dwordx2 s[76:77], s[0:1], 104", "s_mov_b32 s78, 0x10000000", "s_mov_b32 s79, 0x20000", "s_waitcnt lgkmcnt(0)")
        k(f"s_lshl_b32 s80, s2, 8", f"s_add_u32 s80, s80, {WS_STAMP + self.kidx*65536}")
        lab = k.lab("dg")
        k("v_cmp_gt_u32 vcc, 32, v0", "s_and_saveexec_b64 s[82:83], vcc", f"s_cbranch_execz {lab}")
        k("v_lshlrev_b32 v1, 3, v0", "buffer_store_dwordx2 v[254:255], v1, s[76:79], s80 offen")
        k.label(lab)

class VmQ:
    def __init__(self): self.q = []
    def issue(self, tag, n=1): self.q += [tag] * n
    def need(self, *tags):
        last = -1
        for i, t in enumerate(self.q):
            if t in tags: last = i
        n = len(self.q) - 1 - last
        self.q = self.q[last+1:]
        assert n <= 63
        return n

def cost(x):
    op = x.split()[0]
    if op in TRANS: return 8
    if op == "s_nop": return 4 * (int(x.split()[1]) + 1)
    return 4

class Sched:
    def __init__(self, mf, budget=24):
        self.mf = mf; self.n = len(mf); self.b = budget
        self.pre = [[] for _ in mf]
        self.val = [[] for _ in mf]
        self.post = [[] for _ in mf]
        self.tail = []
    def used(self, i): return sum(cost(x) for x in self.pre[i] + self.val[i] + self.post[i])
    def fix(self, i, *ins, where="pre"):
        for x in ins:
            if isinstance(x, (list, tuple)): self.fix(i, *x, where=where)
            else: getattr(self, where)[i].append(x)
    def scatter(self, items, lo, hi, where="pre", mingap=1):
        m = len(items); prev = lo - mingap
        for q, x in enumerate(items):
            i = max(lo + (q * (hi - lo)) // m, prev + mingap)
            i = min(i, self.n - 1)
            self.fix(i, x, where=where); prev = i
    def flow(self, items, lo=0, hi=None):
        hi = self.n if hi is None else hi
        tot = sum(cost(x) for x, _ in items)
        free = [max(0, self.b - self.used(i)) for i in range(lo, hi)]
        F = sum(free)
        if tot <= F: cap = [f * tot / F for f in free]
        else: cap = [f + (tot - F) / (hi - lo) for f in free]
        q = 0; credit = 0.0
        for i in range(lo, hi):
            credit += cap[i - lo]
            room = self.b - self.used(i)
            while q < len(items):
                x, e = items[q]; c = cost(x)
                if e > i: break
                if credit < c * 0.5: break
                if tot <= F and c > room and credit < c + 8: break
                self.val[i].append(x); credit -= c; room -= c; q += 1
        while q < len(items):
            self.val[hi - 1].append(items[q][0]); q += 1
    def out(self):
        o = []
        for i, m in enumerate(self.mf):
            o.append(m); o += self.pre[i] + self.val[i] + self.post[i]
        return o
    def est(self, per=32):
        return sum(max(per, 8 + self.used(i)) for i in range(self.n))
WS_STH = WS_FLAG + 0x10000
WS_STZ = WS_FLAG + 0x40000
```

```python
from common import *
from p36 import wimg_dma_addr, wimg_rd_addr
from p4 import gelu_stream, finish_stats, C0, C1
from mega import nopm0, F_CTX, F_H, F_Z, F_Y, SPIN, FINE
TOP = 131072

def reduce4(M, V, A, ntile, slot, extra=None):
    k, lane, wv, l16, (t0, t1, t2) = M.k, M.lane, M.wv, M.l16, M.t
    for a_ in range(1, 4):
        reg, off = slot(a_)
        k(f"v_add_u32 {t0}, {a_}, {wv}", f"v_and_b32 {t0}, 3, {t0}", f"v_lshl_add_u32 {t1}, {t0}, {13 if reg == 'T' else 15}, {l16}")
        if reg == 'T': k(f"v_add_u32 {t1}, {TOP}, {t1}")
        if a_ == 1: k("s_nop 3")
        for f in range(ntile): k(f"ds_write_b128 {t1}, {A(a_, f)} offset:{off + f*1024}")
    rT, rR = V(), V()
    k(f"v_lshl_add_u32 {rT}, {wv}, 13, {l16}", f"v_add_u32 {rT}, {TOP}, {rT}", f"v_lshl_add_u32 {rR}, {wv}, 15, {l16}")
    if extra: k(extra)
    k("s_waitcnt lgkmcnt(0)", "s_barrier")
    def rd(a_, dst):
        reg, off = slot(a_)
        return [f"ds_read_b128 {dst.sub(4*f, 4)}, {rT if reg == 'T' else rR} offset:{off + f*1024}" for f in range(ntile)]
    return rd

def tail(M):
    k, diag, srd = M.k, M.diag, M.srd
    lane, wv, l16, (t0, t1, t2) = M.lane, M.wv, M.l16, M.t
    sw = M.sw; ws = srd["ws"]; hres = M.hres
    S = M.S()
    srt, sct, sM, sF, st0, st1 = [S() for _ in range(6)]
    sbase = S.p
    vP, vPd, vR = R('v', 239), R('v', 238), R('v', 237)
    vW = [R('v', 232 + i) for i in range(4)]
    V = Alloc('v', 1, 228); S = Alloc('s', sbase, 96)
    sX, sW, srb, scb, sW4 = [S() for _ in range(5)]
    k(f"s_and_b32 {st0}, s2, 7", f"s_lshl_b32 {st0}, {st0}, 2", f"s_bfe_u32 {st1}, s2, 0x20003", f"s_add_u32 {srt}, {st0}, {st1}",
      f"s_lshr_b32 {sct}, s2, 5", f"s_lshl_b32 {sM}, {sw}, 15",
      f"s_lshl_b32 {sF}, {M.sj}, 7", f"s_add_u32 {sF}, {sF}, {WS_FLAG + F_CTX*128}")
    vX = [R('v', 100 + i) for i in range(4)]; rW = [R('v', 104), R('v', 105)]; vW4 = [R('v', 228 + i) for i in range(4)]
    wimg_dma_addr(k, lane, vW, t0, t1)
    k(f"s_lshl_b32 {sW}, {sw}, 20", f"s_lshl_b32 {st0}, {sct}, 7", f"s_add_u32 {sW}, {sW}, {st0}", f"v_mov_b32 {vP}, 0")
    k("s_waitcnt vmcnt(0)", "s_barrier")
    M.arrive(ws, sF)
    k(diag.stamp("ctxdone"))
    q = VmQ(); NK = 32; D = 6
    Xr = R('a', 0, 128)
    def wld(i):
        L = [f"s_add_u32 m0, {sM}, {(i % 8)*4096}"]
        L += [f"buffer_load_dwordx4 {vW[z]}, {srd['wo']}, {sW} offen offset:{1024*z} lds" for z in range(4)]
        L.append(f"s_add_u32 {sW}, {sW}, 32768"); q.issue(("W", i), 4); return L
    def xld(i):
        L = [f"buffer_load_dwordx4 {Xr.sub(16*(i % 8) + 4*a_, 4)}, {vX[a_]}, {ws}, {sX} offen offset:{1024*(i % 4)} sc1" for a_ in range(4)]
        if i % 4 == 3: L.append(f"s_add_u32 {sX}, {sX}, 4096")
        q.issue(("X", i), 4); return L
    for i in range(D + 1): k(nopm0(wld(i)))
    k(f"s_lshr_b32 {st0}, {srt}, 1", f"s_sub_u32 {st1}, 15, {st0}", f"s_min_u32 {st0}, {st0}, {st1}",
      f"s_lshl_b32 {sF}, {st0}, 7", f"s_add_u32 {sF}, {sF}, {WS_FLAG + F_CTX*128}", M.poll_issue(vPd, vP, ws, sF))
    for a_ in range(4):
        k(f"v_add_u32 {t0}, {a_}, {wv}", f"v_and_b32 {t0}, 3, {t0}", f"v_lshl_add_u32 {vX[a_]}, {t0}, 17, {l16}")
    k(f"s_lshl_b32 {sX}, {srt}, 19", f"s_lshl_b32 {st0}, {sw}, 15", f"s_add_u32 {sX}, {sX}, {st0}", f"s_add_u32 {sX}, {sX}, {WS_CTX}")
    ts = wimg_rd_addr(k, lane, rW, t0, t1, 'E8')
    k(f"v_lshl_add_u32 {rW[0]}, {wv}, 15, {rW[0]}", f"v_xor_b32 {rW[1]}, 32, {rW[0]}")
    wimg_dma_addr(k, lane, vW4, t0, t1, rowmul=3584)
    k(f"s_and_b32 {st0}, s2, 7", f"s_lshl_b32 {st0}, {st0}, 1", f"s_bfe_u32 {st1}, s2, 0x10003", f"s_add_u32 {srb}, {st0}, {st1}",
      f"s_lshr_b32 {scb}, s2, 4", f"s_mul_i32 {sW4}, {sw}, {32*3584}", f"s_lshl_b32 {st0}, {scb}, 7", f"s_add_u32 {sW4}, {sW4}, {st0}",
      f"s_cmp_ge_u32 s2, 224", f"s_cselect_b32 {sW4}, 0x10000000, {sW4}")
    def w4ld(z):
        part, n = z >> 2, z & 3
        L = [f"s_add_u32 m0, {sM}, {z*4096}", f"s_add_u32 {st1}, {sW4}, {n*4*32*3584 + (1792 if part == 0 else 0)}"]
        L += [f"buffer_load_dwordx4 {vW4[y]}, {srd['win']}, {st1} offen offset:{1024*y} lds" for y in range(4)]
        q.issue(("W4", z), 4); return L
    k(M.rowmap(t2, t0), f"v_lshrrev_b32 {t1}, 4, {lane}", f"v_lshlrev_b32 {t1}, 3, {t1}", f"v_lshl_add_u32 {vR}, {t2}, 10, {t1}")
    vSt = R('v', 106); vH = R('v', 107); rs = R('v', 108, 8)
    k(f"v_lshlrev_b32 {vSt}, 6, {t2}", f"v_lshl_add_u32 {vH}, {wv}, 14, {l16}",
      f"s_lshl_b32 {st0}, {srt}, 16", f"s_lshl_b32 {st1}, {sct}, 7", f"s_add_u32 {st0}, {st0}, {st1}")
    Wf = [R('v', 2, 16), R('v', 18, 16)]; acc = R('v', 34, 64)
    def A(a_, mt): return acc.sub(16*a_ + 4*mt, 4)
    def reads(i, ts, rW): return [f"ds_read_b64_tr_b16 {Wf[i & 1].sub(4*mt + 2*t, 2)}, {rW[mt & 1]} offset:{(i % 8)*4096 + ts*t + (mt >> 1)*256}" for mt in range(4) for t in range(2)]
    k("s_waitcnt vmcnt(0)"); q.q = []
    k(reads(0, ts, rW))
    M.poll_check(vPd, vP, ws, sF, 32)
    k(diag.stamp("ctxwait"))
    for i in range(D + 1): k(xld(i))
    k([f"buffer_load_dwordx2 {rs.sub(2*mt, 2)}, {vR}, {srd['x']}, {st0} offen offset:{32*mt}" for mt in range(4)]); q.issue("R", 4)
    def gemm_step(i, last):
        mf = []
        for mt in range(4):
            for a_ in range(4):
                d = A(a_, mt)
                mf.append(f"{M16} {d}, {Wf[i & 1].sub(4*mt, 4)}, {Xr.sub(16*(i % 8) + 4*a_, 4)}, {0 if i == 0 else d}")
        return Sched(mf, 8)
    for i in range(NK):
        sc = gemm_step(i, NK)
        k(f"s_waitcnt vmcnt({q.need(('X', i), ('W', i + 1))}) lgkmcnt(0)")
        if i + 1 < NK:
            for z, x in enumerate(reads(i + 1, ts, rW)): sc.fix(z, x)
        j = i + 1 + D
        L = wld(j) + xld(j) if j < NK else w4ld(j - NK)
        for z, x in enumerate(L): sc.fix(z + 4, x)
        k(sc.out())
    k(diag.stamp("p3"))
    V = Alloc('v', 116, 228)
    slot46 = lambda a_: ('T', (a_ - 1)*4096) if a_ < 3 else ('R', 7*4096)
    ib = V(48, 2); rf = V(16)
    def finish64(res_unpack):
        rd = reduce4(M, V, A, 4, slot46)
        for a_ in range(1, 4): k(rd(a_, ib.sub(16*(a_ - 1), 16)))
        k(res_unpack)
        for z in range(16): k(f"v_add_f32 {acc[z]}, {acc[z]}, {rf[z]}")
        for a_ in range(3):
            k(f"s_waitcnt lgkmcnt({8 - 4*a_})")
            for z in range(16): k(f"v_add_f32 {acc[z]}, {acc[z]}, {ib[16*a_ + z]}")
    def unpack(src): return [x for z in range(8) for x in (f"v_lshlrev_b32 {rf[2*z]}, 16, {src[z]}", f"v_and_b32 {rf[2*z+1]}, 0xffff0000, {src[z]}")]
    k("s_barrier")
    finish64(unpack(rs))
    for z in range(8): k(f"v_cvt_pk_bf16_f32 {hres[z]}, {acc[2*z]}, {acc[2*z+1]}")
    k(f"s_lshl_b32 {st1}, {sct}, 11", f"s_lshl_b32 {st0}, {srt}, 16", f"s_add_u32 {st1}, {st1}, {st0}", f"s_add_u32 {st1}, {st1}, {WS_H}")
    for P in range(2): k(f"buffer_store_dwordx4 {hres.sub(4*P, 4)}, {vH}, {ws}, {st1} offen offset:{1024*P} sc1")
    sm = V(2, 2); u_ = V(2, 2)
    k(unpack(hres))
    k(f"v_add_f32 {sm[0]}, {rf[0]}, {rf[1]}", f"v_mul_f32 {sm[1]}, {rf[0]}, {rf[0]}", f"v_fmac_f32 {sm[1]}, {rf[1]}, {rf[1]}")
    for z in range(2, 16): k(f"v_add_f32 {sm[0]}, {sm[0]}, {rf[z]}", f"v_fmac_f32 {sm[1]}, {rf[z]}, {rf[z]}")
    for sw_ in ("v_permlane16_swap_b32", "v_permlane32_swap_b32"):
        k(f"v_mov_b32 {u_[0]}, {sm[0]}", f"v_mov_b32 {u_[1]}, {sm[1]}", "s_nop 0", f"{sw_} {u_[0]}, {sm[0]}", f"{sw_} {u_[1]}, {sm[1]}",
          f"v_add_f32 {sm[0]}, {sm[0]}, {u_[0]}", f"v_add_f32 {sm[1]}, {sm[1]}, {u_[1]}")
    k(f"v_lshlrev_b32 {t0}, 3, {lane}", f"v_lshl_add_u32 {t0}, {wv}, 10, {t0}",
      f"s_lshl_b32 {st0}, {srt}, 12", f"s_lshl_b32 {st1}, {sct}, 7", f"s_add_u32 {st0}, {st0}, {st1}", f"s_add_u32 {st0}, {st0}, {WS_STH}",
      "s_mov_b64 exec, 0xffff", f"buffer_store_dwordx2 {sm}, {t0}, {ws}, {st0} offen sc1", "s_mov_b64 exec, -1")
    k(f"s_lshr_b32 {sF}, {srt}, 1", f"s_lshl_b32 {sF}, {sF}, 7", f"s_add_u32 {sF}, {sF}, {WS_FLAG + F_H*128}")
    k("s_waitcnt vmcnt(0)", "s_barrier"); q.q = []
    M.arrive(ws, sF)
    k(diag.stamp("hdone"))
    S5 = Alloc('s', S.p, 96)
    srt5, scb5, sZ5, sW5 = [S5() for _ in range(4)]
    vW5 = [R('v', 220 + i) for i in range(8)]
    def p5_setup():
        k(f"s_bfe_u32 {st0}, s2, 0x20001", f"s_lshl_b32 {st0}, {st0}, 3", f"s_bfe_u32 {st1}, s2, 0x30003", f"s_add_u32 {srt5}, {st0}, {st1}",
          f"s_and_b32 {st0}, s2, 1", f"s_lshl_b32 {st0}, {st0}, 2", f"s_lshr_b32 {st1}, s2, 6", f"s_add_u32 {scb5}, {st0}, {st1}")
        k(f"v_lshrrev_b32 {t1}, 4, {lane}", f"v_xor_b32 {t1}, {t1}, {lane}", f"v_and_b32 {t1}, 7, {t1}", f"v_lshlrev_b32 {t1}, 4, {t1}",
          f"v_bfe_u32 {t0}, {lane}, 3, 2", f"v_lshl_add_u32 {t1}, {t0}, 12, {t1}", f"v_lshrrev_b32 {t0}, 5, {lane}", f"v_lshl_add_u32 {t1}, {t0}, 15, {t1}",
          f"v_add_u32 {t1}, 4096, {t1}")
        for a_ in range(4):
            e, o = vW5[2*a_], vW5[2*a_ + 1]
            k(f"v_add_u32 {t0}, {a_}, {wv}", f"v_and_b32 {t2}, 1, {t0}", f"v_lshl_add_u32 {e}, {t2}, 14, {t1}",
              f"v_bfe_u32 {t2}, {t0}, 1, 1", f"v_lshl_add_u32 {e}, {t2}, 17, {e}", f"v_xor_b32 {o}, 64, {e}",
              f"v_add_u32 {o}, {65536 - 1024*((2*a_ + 1) % 4)}, {o}")
            if a_ & 1: k(f"v_subrev_u32 {e}, 2048, {e}")
        wsp = srd['wsp']
        k(f"s_sub_u32 {wsp[0]}, {wsp[0]}, 4096", f"s_subb_u32 {wsp[1]}, {wsp[1]}, 0", f"s_mov_b32 {wsp[2]}, {SZ['wsp'] + 4096}",
          f"s_lshl_b32 {sW5}, {srt5}, 18", f"s_lshl_b32 {st0}, {sw}, 10", f"s_add_u32 {sW5}, {sW5}, {st0}",
          f"s_mul_i32 {sZ5}, {scb5}, {7*65536}", f"s_lshl_b32 {st0}, {sw}, 14", f"s_add_u32 {sZ5}, {sZ5}, {st0}", f"s_add_u32 {sZ5}, {sZ5}, {WS_Z2}")
    def w5ld(n, half):
        L = [f"s_add_u32 m0, {sM}, {(n % 4)*8192 + half*4096}"]
        L += [f"buffer_load_dwordx4 {vW5[4*half + z]}, {srd['wsp']}, {sW5} offen offset:{1024*z} lds" for z in range(4)]
        if half: L.append(f"s_add_u32 {sW5}, {sW5}, 128")
        q.issue(("W5", n), 4); return L
    Lidle, Lp5 = k.lab("idle4"), k.lab("p5")
    k("s_cmp_ge_u32 s2, 224", f"s_cbranch_scc1 {Lidle}")
    V = Alloc('v', 1, 220); S4 = Alloc('s', S5.p, 96)
    sH, sc0, sZ, sblk = [S4() for _ in range(4)]
    k(w4ld(7))
    k(f"s_lshl_b32 {sF}, {srb}, 7", f"s_add_u32 {sF}, {sF}, {WS_FLAG + F_H*128}", M.poll_issue(vPd, vP, ws, sF))
    p5_setup()
    rW4 = [V(), V(), V(), V()]; vHb = V()
    ts4 = wimg_rd_addr(k, lane, rW4, t0, t1, 'E16')
    k(f"v_xor_b32 {rW4[1]}, 32, {rW4[0]}", f"v_add_u32 {rW4[2]}, 0x10000, {rW4[0]}", f"v_add_u32 {rW4[3]}, 0x10000, {rW4[1]}",
      f"v_add_u32 {vHb}, 16384, {l16}",
      f"s_lshl_b32 {sblk}, {srb}, 2", f"s_add_u32 {sblk}, {sblk}, {sw}", f"s_lshl_b32 {sH}, {sblk}, 15", f"s_add_u32 {sH}, {sH}, {WS_H}")
    Hf = R('a', 0, 128)
    ones = V(4, 2); vc1 = V()
    for z in range(4): k(f"v_mov_b32 {ones[z]}, 0x3f803f80")
    k(f"s_mov_b32 {sc0}, {f2u(-C0)}", f"v_mov_b32 {vc1}, {f2u(-C1)}")
    Wf4 = [V(16, 2), V(16, 2)]; acc4 = [V(48, 2), V(48, 2)]
    def A4(part, u, mt): return acc4[part].sub(16*u + 4*mt, 4)
    def reads4(j):
        part, i = j >> 4, j & 15; w_, n = i & 3, i >> 2
        return [f"ds_read_b64_tr_b16 {Wf4[j & 1].sub(4*mt + 2*t, 2)}, {rW4[2*(w_ >> 1) + (mt & 1)]} offset:{(w_ & 1)*32768 + (4*part + n)*4096 + ts4*t + (mt >> 1)*256}" for mt in range(4) for t in range(2)]
    sp = V(8, 2); vS, vSw, vS2, vS1 = V(), V(), V(), V()
    k(f"v_and_b32 {t0}, 15, {lane}", f"v_lshlrev_b32 {t0}, 3, {t0}", f"v_bfe_u32 {t1}, {lane}, 4, 1", f"v_lshl_add_u32 {vS}, {t1}, 10, {t0}",
      f"v_lshrrev_b32 {t1}, 5, {lane}", f"v_lshl_add_u32 {vS}, {t1}, 9, {vS}",
      f"v_lshlrev_b32 {t2}, 13, {wv}", f"v_add_u32 {t2}, {TOP}, {t2}", f"v_add_u32 {vS1}, {t0}, {t2}",
      f"v_and_b32 {t0}, 31, {lane}", f"v_lshl_add_u32 {vSw}, {t0}, 3, {t2}",
      f"v_lshrrev_b32 {t0}, 4, {lane}", f"v_lshl_add_u32 {vS2}, {t0}, 5, {t2}",
      f"s_lshl_b32 {st0}, {sblk}, 11", f"s_add_u32 {st0}, {st0}, {WS_STH}")
    st2 = V(16, 2); st1r = V(4, 2); sm = V(2, 2); u_ = V(2, 2); tm = V(8)
    def half_reduce():
        return [f"v_mov_b32 {u_[0]}, {sm[0]}", f"v_mov_b32 {u_[1]}, {sm[1]}", "s_nop 0", f"v_permlane32_swap_b32 {u_[0]}, {sm[0]}", f"v_permlane32_swap_b32 {u_[1]}, {sm[1]}",
                f"v_add_f32 {sm[0]}, {sm[0]}, {u_[0]}", f"v_add_f32 {sm[1]}, {sm[1]}, {u_[1]}"]
    rd_st2 = [f"ds_read_b128 {st2.sub(4*z, 4)}, {vS2} offset:{128*(z >> 1) + 16*(z & 1)}" for z in range(4)]
    k(reads4(0))
    k("s_waitcnt vmcnt(0)"); q.q = []
    M.poll_check(vPd, vP, ws, sF, 16)
    k(diag.stamp("hwait"))
    for i in range(16):
        for u in range(2): k(f"buffer_load_dwordx4 {Hf.sub(8*i + 4*u, 4)}, {vHb if u else l16}, {ws}, {sH} offen offset:{1024*(i % 4)} sc1")
        q.issue(("H", i), 2)
        if i % 4 == 3: k(f"s_add_u32 {sH}, {sH}, 4096")
        if i == 3:
            k([f"buffer_load_dwordx2 {sp.sub(2*z, 2)}, {vS}, {ws}, {st0} offen offset:{128*z} sc1" for z in range(4)]); q.issue("S", 4)
    hst = [f"v_add_f32 {sm[0]}, {sp[0]}, {sp[2]}", f"v_add_f32 {sm[1]}, {sp[1]}, {sp[3]}", f"v_add_f32 {u_[0]}, {sp[4]}, {sp[6]}", f"v_add_f32 {u_[1]}, {sp[5]}, {sp[7]}",
           f"v_add_f32 {sm[0]}, {sm[0]}, {u_[0]}", f"v_add_f32 {sm[1]}, {sm[1]}, {u_[1]}"] + half_reduce() + finish_stats(sm[0], sm[1], 512) + \
          [f"ds_write_b64 {vSw}, {sm}"] + rd_st2 + [f"ds_read_b64 {st1r.sub(2*u, 2)}, {vS1} offset:{128*u}" for u in range(2)]
    def gemm4(part):
        for i in range(16):
            j = 16*part + i; mf = []
            for mt in range(4):
                for u in range(3):
                    d = A4(part, u, mt); x = ones if u == 2 else Hf.sub(8*i + 4*u, 4); w_ = Wf4[j & 1].sub(4*mt, 4); c = 0 if i == 0 else d
                    mf.append(f"{M16} {d}, {x}, {w_}, {c}" if part == 0 else f"{M16} {d}, {w_}, {x}, {c}")
            sc = Sched(mf, 8)
            if part == 0: k(f"s_waitcnt vmcnt({q.need(('H', i))}) lgkmcnt(0)")
            else: k("s_waitcnt lgkmcnt(0)")
            if j == 16: k("s_barrier")
            if j < 31:
                for z, x in enumerate(reads4(j + 1)): sc.fix(z, x)
            if j == 8: k(hst)
            if part == 1 and i < 8 and i % 2 == 0:
                for z, x in enumerate(w5ld(i >> 2, (i >> 1) & 1)): sc.fix(2*z, x)
            k(sc.out())
    gemm4(0)
    k(diag.stamp("p4a"))
    k("s_nop 7")
    z2 = []
    for u in range(2):
        for mt in range(4):
            for e in range(4):
                r = A4(0, u, mt)[e]; row = 4*u + e
                k(f"v_mul_f32 {r}, {r}, {st2[2*row]}", f"v_fmac_f32 {r}, {st2[2*row+1]}, {A4(0, 2, mt)[0]}")
                z2.append(r)
    k(gelu_stream(z2, tm, sc0, vc1))
    ps = R('v', A4(0, 2, 0).b, 16)
    for u in range(2):
        for e in range(4):
            row = 4*u + e; a0, a1, a2, a3 = [A4(0, u, mt)[e] for mt in range(4)]
            k(f"v_add_f32 {ps[2*row]}, {a0}, {a1}", f"v_mul_f32 {ps[2*row+1]}, {a0}, {a0}", f"v_add_f32 {tm[0]}, {a2}, {a3}",
              f"v_fmac_f32 {ps[2*row+1]}, {a1}, {a1}", f"v_add_f32 {ps[2*row]}, {ps[2*row]}, {tm[0]}",
              f"v_fmac_f32 {ps[2*row+1]}, {a2}, {a2}", f"v_fmac_f32 {ps[2*row+1]}, {a3}, {a3}")
    for ror in (8, 4, 2, 1):
        for z in range(16): k(f"v_add_f32_dpp {ps[z]}, {ps[z]}, {ps[z]} row_ror:{ror} row_mask:0xf bank_mask:0xf")
    k(f"v_lshrrev_b32 {t0}, 4, {lane}", f"v_lshlrev_b32 {t0}, 5, {t0}", f"v_lshl_add_u32 {t0}, {wv}, 8, {t0}",
      f"s_mul_i32 {sZ}, {srb}, {14*1024}", f"s_add_u32 {sZ}, {sZ}, {WS_STZ}", f"s_lshl_b32 {st0}, {scb}, 10", f"s_add_u32 {st0}, {st0}, {sZ}",
      "s_mov_b32 exec_lo, 0x00010001", "s_mov_b32 exec_hi, 0x00010001")
    for z in range(4): k(f"buffer_store_dwordx4 {ps.sub(4*z, 4)}, {t0}, {ws}, {st0} offen offset:{128*(z >> 1) + 16*(z & 1)} sc1")
    k("s_mov_b64 exec, -1")
    k(diag.stamp("p4b"))
    gemm4(1)
    k(diag.stamp("p4c"))
    pl = V(14, 2); vPs = V()
    k(f"v_and_b32 {t0}, 31, {lane}", f"v_lshlrev_b32 {t0}, 3, {t0}", f"v_lshl_add_u32 {t0}, {wv}, 8, {t0}",
      f"v_lshrrev_b32 {t1}, 5, {lane}", f"v_mul_u32_u24 {t1}, 7168, {t1}", f"v_add_u32 {vPs}, {t0}, {t1}", f"s_add_u32 {st0}, {sZ}, 4096")
    def poll(): return [f"buffer_load_dwordx2 {pl.sub(2*z, 2)}, {vPs}, {ws}, {sZ if z < 4 else st0} offen offset:{1024*(z % 4)} sc1" for z in range(7)]
    k(poll(), "s_barrier")
    for n in (2, 3): k(nopm0(w5ld(n, 0)), nopm0(w5ld(n, 1)))
    z1 = []
    for u in range(2):
        for mt in range(4):
            for e in range(4):
                r = A4(1, u, mt)[e]
                k(f"v_mul_f32 {r}, {r}, {st1r[2*u]}", f"v_fmac_f32 {r}, {st1r[2*u+1]}, {A4(1, 2, mt)[e]}")
                z1.append(r)
    lp, ld = k.lab("poll"), k.lab("got")
    k(f"s_mov_b32 {M.sspin}, {SPIN}", "s_waitcnt vmcnt(16)")
    k.label(lp)
    k(f"v_max_u32 {t0}, {pl[0]}, {pl[1]}")
    for z in range(1, 7): k(f"v_max3_u32 {t0}, {t0}, {pl[2*z]}, {pl[2*z+1]}")
    k(f"v_cmp_eq_u32 vcc, -1, {t0}", f"s_cbranch_vccz {ld}", f"s_sub_u32 {M.sspin}, {M.sspin}, 1", f"s_cbranch_scc1 {ld}", poll(), "s_waitcnt vmcnt(0)", f"s_branch {lp}")
    k.label(ld)
    k(f"v_add_f32 {sm[0]}, {pl[0]}, {pl[2]}", f"v_add_f32 {sm[1]}, {pl[1]}, {pl[3]}")
    for z in range(2, 7): k(f"v_add_f32 {sm[0]}, {sm[0]}, {pl[2*z]}", f"v_add_f32 {sm[1]}, {sm[1]}, {pl[2*z+1]}")
    k(half_reduce(), finish_stats(sm[0], sm[1], 896), f"ds_write_b64 {vSw}, {sm}", rd_st2)
    k(f"s_lshl_b32 {st0}, {scb}, 18", f"s_lshl_b32 {st1}, {sblk}, 10", f"s_add_u32 {st0}, {st0}, {st1}", f"s_add_u32 {st0}, {st0}, {WS_Z2}", "s_waitcnt lgkmcnt(0)")
    o = Wf4[1]
    for mt in range(4):
        for u in range(2):
            for e in range(4):
                r = A4(0, u, mt)[e]; row = 4*u + e
                k(f"v_fma_f32 {r}, {r}, {st2[2*row]}, {st2[2*row+1]}")
        oo = o.sub(4*mt, 4)
        for z in range(4):
            r = A4(0, z >> 1, mt)
            k(f"v_cvt_pk_bf16_f32 {oo[z]}, {r[2*(z & 1)]}, {r[2*(z & 1) + 1]}")
        k(f"buffer_store_dwordx4 {oo}, {l16}, {ws}, {st0} offen sc1")
        if mt < 3: k(f"s_add_u32 {st0}, {st0}, 65536")
    k(diag.stamp("p4d"))
    k(f"s_mul_i32 {sH}, {sblk}, {2*28672}", f"s_lshl_b32 {st0}, {scb}, 11", f"s_add_u32 {sH}, {sH}, {st0}", f"s_add_u32 {sH}, {sH}, {WS_Z1}",
      f"s_add_u32 {st0}, {sH}, 28672")
    o = Wf4[0]
    for u in range(2):
        for P in range(2):
            k(gelu_stream(z1[16*u + 8*P:16*u + 8*P + 8], tm, sc0, vc1))
            oo = o.sub(8*u + 4*P, 4)
            for z in range(4):
                r = A4(1, u, 2*P + (z >> 1))
                k(f"v_cvt_pk_bf16_f32 {oo[z]}, {r[2*(z & 1)]}, {r[2*(z & 1) + 1]}")
            k(f"buffer_store_dwordx4 {oo}, {l16}, {ws}, {st0 if u else sH} offen offset:{1024*P} sc1")
    k(f"s_lshl_b32 {sF}, {scb}, 7", f"s_add_u32 {sF}, {sF}, {WS_FLAG + F_Z*128}")
    k("s_waitcnt vmcnt(0)", "s_barrier")
    M.arrive(ws, sF)
    k(f"s_branch {Lp5}")
    k.label(Lidle)
    p5_setup()
    for n in range(4): k(nopm0(w5ld(n, 0)), nopm0(w5ld(n, 1)))
    if diag.on:
        for z in range(5): k(diag.stamp(idx=diag.n - 5 + z))
    k.label(Lp5)
    k(diag.stamp("zdone"))
    q.q = []
    V = Alloc('v', 1, 220); S6 = Alloc('s', S5.p, 96)
    sY, sB, sW6, sX6 = [S6() for _ in range(4)]
    k(f"s_mul_i32 {st0}, {scb5}, 7", f"s_add_u32 {st1}, {st0}, 6", f"s_lshr_b32 {st0}, {st0}, 2", f"s_lshr_b32 {st1}, {st1}, 2",
      f"v_and_b32 {t0}, 3, {lane}", f"v_add_u32 {t0}, {st0}, {t0}", f"v_min_u32 {t0}, {st1}, {t0}", f"v_lshlrev_b32 {vP}, 7, {t0}",
      f"s_mov_b32 {sF}, {WS_FLAG + F_Z*128}", M.poll_issue(vPd, vP, ws, sF))
    vZ = [l16] + [V() for _ in range(6)]
    for f in range(1, 7): k(f"v_add_u32 {vZ[f]}, {65536*f}, {l16}")
    rC = [V(), V()]
    k(f"v_and_b32 {t0}, 15, {lane}", f"v_lshrrev_b32 {t1}, 1, {t0}", f"v_lshrrev_b32 {t2}, 4, {lane}",
      f"v_xor_b32 {t1}, {t1}, {t2}", f"v_lshlrev_b32 {t1}, 4, {t1}", f"v_lshl_add_u32 {t0}, {t0}, 7, {t1}",
      f"v_lshl_add_u32 {rC[0]}, {wv}, 15, {t0}", f"v_xor_b32 {rC[1]}, 64, {rC[0]}")
    NZ = 7; DZ = 5
    Zr = R('a', 0, 28*NZ); Wf5 = [R('a', 200, 16), R('a', 216, 16)]
    acc5 = V(112, 2)
    def A5(a_, f): return acc5.sub(28*a_ + 4*f, 4)
    def zld(i):
        L = [f"buffer_load_dwordx4 {Zr.sub(28*(i % NZ) + 4*f, 4)}, {vZ[f]}, {ws}, {sZ5} offen offset:{1024*(i % 4)} sc1" for f in range(7)]
        if i % 4 == 3: L.append(f"s_add_u32 {sZ5}, {sZ5}, 4096")
        q.issue(("Z", i), 7); return L
    def reads5(i): return [f"ds_read_b128 {Wf5[i & 1].sub(4*a_, 4)}, {rC[i & 1]} offset:{((i >> 1) % 4)*8192 + a_*2048}" for a_ in range(4)]
    z1r = V(14, 2); bb = V(); vY = [V(), V()]; vB = V(); l8 = V()
    k(f"s_and_b32 {st1}, {scb5}, 1", f"s_lshl_b32 {st0}, {st1}, 3", f"v_add_u32 {vY[0]}, {st0}, {l16}",
      f"s_mul_i32 {st0}, {st1}, 1016", f"s_add_u32 {st0}, {st0}, 8", f"v_add_u32 {vY[1]}, {st0}, {l16}",
      M.rowmap(t2, t0), f"v_lshlrev_b32 {vB}, 1, {t2}", f"s_lshl_b32 {sB}, {srt5}, 7", f"v_lshlrev_b32 {l8}, 3, {lane}",
      f"s_lshl_b32 {st0}, {srt5}, 2", f"s_add_u32 {st0}, {st0}, {sw}", f"s_mul_i32 {st0}, {st0}, 28672",
      f"s_mul_i32 {st1}, {scb5}, 3584", f"s_add_u32 {sY}, {st0}, {st1}", f"s_add_u32 {sY}, {sY}, {WS_Y}",
      f"s_mul_i32 {st1}, {scb5}, 7", f"s_lshr_b32 {st1}, {st1}, 1", f"s_lshl_b32 {st1}, {st1}, 10",
      f"s_add_u32 {st0}, {st0}, {st1}", f"s_add_u32 {st0}, {st0}, {WS_Z1}",
      f"s_mul_i32 {sW6}, {sw}, {224*1024}", f"s_lshl_b32 {st1}, {sct}, 7", f"s_add_u32 {sW6}, {sW6}, {st1}")
    def w6ld(i):
        L = [f"s_add_u32 m0, {sM}, {i*4096}"]
        if i < 6:
            L.append(f"s_add_u32 {st1}, {sW6}, {((i // 3)*112 + (i % 3)*32)*1024}")
            L += [f"buffer_load_dwordx4 {vW[z]}, {srd['wout']}, {st1} offen offset:{1024*z} lds" for z in range(4)]
        else:
            L.append(f"s_add_u32 {st1}, {sW6}, {96*1024}")
            L += [f"buffer_load_dwordx4 {vW[z]}, {srd['wout']}, {st1} offen offset:{1024*z} lds" for z in range(2)]
            L.append(f"s_add_u32 {st1}, {sW6}, {(112 + 96 - 16)*1024}")
            L += [f"buffer_load_dwordx4 {vW[z]}, {srd['wout']}, {st1} offen offset:{1024*z} lds" for z in range(2, 4)]
        q.issue(("W6", i), 4); return L
    k("s_waitcnt vmcnt(0)")
    k(reads5(0))
    M.poll_check(vPd, vP, ws, sF, 16)
    k(diag.stamp("zwait"))
    for i in range(DZ): k(zld(i))
    k([f"buffer_load_dwordx2 {z1r.sub(2*f, 2)}, {vY[f & 1]}, {ws}, {st0} offen offset:{1024*(f >> 1)} sc1" for f in range(7)],
      f"buffer_load_ushort {bb}, {vB}, {srd['bsp']}, {sB} offen"); q.issue("E", 8)
    for i in range(16):
        mf = []
        for f in range(7):
            for a_ in range(4):
                d = A5(a_, f)
                mf.append(f"{M16} {d}, {Zr.sub(28*(i % NZ) + 4*f, 4)}, {Wf5[i & 1].sub(4*a_, 4)}, {0 if i == 0 else d}")
        sc = Sched(mf, 8)
        k(f"s_waitcnt vmcnt({q.need(('Z', i), ('W5', (i + 1) >> 1))}) lgkmcnt(0)")
        if i < 15:
            for z, x in enumerate(reads5(i + 1)): sc.fix(z, x)
        L = []
        if i + DZ < 16: L += zld(i + DZ)
        n = ((i - 1) >> 1) + 4
        if i >= 1 and n < 8: L += w5ld(n, (i - 1) & 1)
        if i >= 12: L += w6ld(i - 12)
        for z, x in enumerate(L): sc.fix(4 + z, x)
        k(sc.out())
    k(diag.stamp("p5"))
    ib = V(56, 2)
    k("s_barrier")
    rd = reduce4(M, V, A5, 7, lambda a_: ('T', 0) if a_ == 1 else ('R', 16384 + (a_ - 2)*7168))
    k(rd(1, ib[0:28]), rd(2, ib[28:56]))
    k(f"v_lshlrev_b32 {bb}, 16, {bb}")
    for z in range(28): k(f"v_add_f32 {acc5[z]}, {acc5[z]}, {bb}")
    k("s_waitcnt lgkmcnt(7)", rd(3, acc5[28:56]))
    for z in range(28): k(f"v_add_f32 {acc5[z]}, {acc5[z]}, {ib[z]}")
    k("s_waitcnt lgkmcnt(7)")
    for z in range(28): k(f"v_add_f32 {acc5[z]}, {acc5[z]}, {ib[28 + z]}")
    k("s_waitcnt lgkmcnt(0)")
    for z in range(14):
        k(f"v_add_f32 {acc5[2*z]}, {acc5[2*z]}, {acc5[28 + 2*z]}", f"v_add_f32 {acc5[2*z+1]}, {acc5[2*z+1]}, {acc5[29 + 2*z]}",
          f"v_lshlrev_b32 {t0}, 16, {z1r[z]}", f"v_and_b32 {t1}, 0xffff0000, {z1r[z]}",
          f"v_mul_f32 {t0}, {t0}, {acc5[2*z]}", f"v_mul_f32 {t1}, {t1}, {acc5[2*z+1]}", f"v_cvt_pk_bf16_f32 {z1r[z]}, {t0}, {t1}")
        if z % 4 == 3: k(f"buffer_store_dwordx4 {z1r.sub(z - 3, 4)}, {l16}, {ws}, {sY} offen offset:{1024*(z >> 2)} sc1")
    k(f"buffer_store_dwordx2 {z1r.sub(12, 2)}, {l8}, {ws}, {sY} offen offset:3072 sc1")
    k(f"s_lshl_b32 {sF}, {srt5}, 7", f"s_add_u32 {sF}, {sF}, {WS_FLAG + F_Y*128}")
    k("s_waitcnt vmcnt(0)", "s_barrier"); q.q = []
    M.arrive(ws, sF)
    k(diag.stamp("ydone"))
    for i in range(4, 7): k(w6ld(i))
    k(f"v_mov_b32 {vP}, 0", f"s_lshl_b32 {sF}, {srt}, 7", f"s_add_u32 {sF}, {sF}, {WS_FLAG + F_Y*128}", M.poll_issue(vPd, vP, ws, sF))
    vX8 = [R('v', 108 + i) for i in range(4)]
    for a_ in range(4):
        k(f"v_add_u32 {t0}, {a_}, {wv}", f"v_and_b32 {t0}, 3, {t0}", f"v_mul_u32_u24 {t0}, 28672, {t0}", f"v_add_u32 {vX[a_]}, {t0}, {l16}",
          f"v_lshl_add_u32 {vX8[a_]}, {lane}, 3, {t0}")
    ts6 = wimg_rd_addr(k, lane, rW, t0, t1, 'E16')
    k(f"v_lshl_add_u32 {rW[0]}, {wv}, 15, {rW[0]}", f"v_xor_b32 {rW[1]}, 32, {rW[0]}",
      f"s_mul_i32 {sX6}, {srt}, {4*28672}", f"s_mul_i32 {st0}, {sw}, 7168", f"s_add_u32 {sX6}, {sX6}, {st0}", f"s_add_u32 {sX6}, {sX6}, {WS_Y}",
      f"s_add_u32 {sY}, {sX6}, 3584",
      f"s_lshl_b32 {st0}, {srt}, 16", f"s_lshl_b32 {st1}, {sct}, 7", f"s_add_u32 {st0}, {st0}, {st1}")
    k(reads(0, ts6, rW))
    k("s_waitcnt vmcnt(0)"); q.q = []
    M.poll_check(vPd, vP, ws, sF, 8)
    k(diag.stamp("ywait"))
    for i in range(6):
        k([f"buffer_load_dwordx4 {Xr.sub(16*i + 4*a_, 4)}, {vX[a_]}, {ws}, {sY if i >= 3 else sX6} offen offset:{1024*(i % 3)} sc1" for a_ in range(4)]); q.issue(("X", i), 4)
    k([f"buffer_load_dwordx2 {Xr.sub(96 + 4*a_ + 2*h, 2)}, {vX8[a_]}, {ws}, {sY if h else sX6} offen offset:3072 sc1" for a_ in range(4) for h in range(2)]); q.issue(("X", 6), 8)
    for i in range(7):
        sc = gemm_step(i, 7)
        k(f"s_waitcnt vmcnt({q.need(('X', i))}) lgkmcnt(0)")
        if i + 1 < 7:
            for z, x in enumerate(reads(i + 1, ts6, rW)): sc.fix(z, x)
        k(sc.out())
    k(diag.stamp("p6"))
    V = Alloc('v', 180, 220); ib = R('v', 116, 48)
    finish64(unpack(hres))
    for z in range(8): k(f"v_cvt_pk_bf16_f32 {rs[z]}, {acc[2*z]}, {acc[2*z+1]}")
    for mt in range(4): k(f"buffer_store_dwordx2 {rs.sub(2*mt, 2)}, {vR}, {srd['out']}, {st0} offen offset:{32*mt}")
```

```python
from common import *
import math, os, sys, json
QSCALE = math.log2(math.e) / math.sqrt(128.0)
C0 = 2*math.sqrt(2/math.pi)*math.log2(math.e)
C1 = C0*0.044715
KNAME = "sequential_preLN__compressed_kv_cla__mixer_gmlp__prompt_kernel"
F_KV, F_CTX, F_H, F_Z, F_Y = 0, 32, 40, 56, 70
SPIN = 0x20000
LA = 8
FINE = int(os.environ.get("FINE", 0))

def nopm0(L):
    o = []
    for i, x in enumerate(L):
        o.append(x)
        if " m0," in x and i + 1 < len(L) and L[i+1].endswith("lds") or (" m0," in x and i + 1 < len(L) and " lds" in L[i+1]): o.append("s_nop 0")
    return o

class Mega:
    def __init__(self, dg=False, thr=2.0**30, stop=None):
        self.k = k = Kern(KNAME)
        self.diag = Diag(k, 0, dg); k.diag = self.diag
        self.thr = thr; self.stop = stop
        S = Alloc('s', 4, 96)
        self.srd = {n: S(4) for n in ("x", "ckv", "wq", "wuk", "wuv", "wo", "win", "wsp", "bsp", "wout", "out", "dbg", "ws")}
        self.kv = S(4)
        self.sw, self.sh, self.sj, self.sspin = S(), S(), S(), S()
        self.s0 = S.p
        self.lane, self.wv, self.l16 = R('v', 253), R('v', 252), R('v', 251)
        self.t = [R('v', 250), R('v', 249), R('v', 248)]
        self.hres = R('v', 240, 8)
        self.rare = []
    def S(self): return Alloc('s', self.s0, 96)

    def arrive(self, srd, soff):
        k = self.k; lab = k.lab("na"); t = self.t
        k(f"s_cmp_lg_u32 {self.sw}, 0", f"s_cbranch_scc1 {lab}", f"v_mov_b32 {t[0]}, 1", f"v_mov_b32 {t[1]}, 0", "s_mov_b64 exec, 1",
          f"buffer_atomic_add {t[0]}, {t[1]}, {srd}, {soff} offen sc1", "s_mov_b64 exec, -1")
        k.label(lab)
    def poll_issue(self, dst, voff, srd, soff):
        return f"buffer_load_dword {dst}, {voff}, {srd}, {soff} offen sc1"
    def poll_check(self, dst, voff, srd, soff, target):
        k = self.k; lp, ld = k.lab("sp"), k.lab("go")
        k(f"s_mov_b32 {self.sspin}, {SPIN}")
        k.label(lp)
        k(f"v_cmp_gt_u32 vcc, {target}, {dst}", f"s_cbranch_vccz {ld}", f"s_sub_u32 {self.sspin}, {self.sspin}, 1", f"s_cbranch_scc1 {ld}",
          self.poll_issue(dst, voff, srd, soff), "s_waitcnt vmcnt(0)", f"s_branch {lp}")
        k.label(ld)
    def rowmap(self, dst, tmp):
        return [f"v_bfe_u32 {dst}, {self.lane}, 2, 2", f"v_lshlrev_b32 {dst}, 3, {dst}", f"v_and_b32 {tmp}, 3, {self.lane}", f"v_add_u32 {dst}, {dst}, {tmp}",
                f"v_and_b32 {tmp}, 1, {self.wv}", f"v_lshl_add_u32 {dst}, {tmp}, 2, {dst}", f"v_lshrrev_b32 {tmp}, 1, {self.wv}", f"v_lshl_add_u32 {dst}, {tmp}, 5, {dst}"]

    def entry(self):
        k = self.k
        k(self.diag.stamp("start"))
        k("s_cmp_ge_u32 s2, 256", f"s_cbranch_scc1 {k.name}_end")
        first = ("x", "ckv", "wuk", "wuv", "ws")
        for n in first: k(f"s_load_dwordx2 {self.srd[n][0:2]}, s[0:1], {ARG[n]}")
        for n, r in self.srd.items():
            if n not in first: k(f"s_load_dwordx2 {r[0:2]}, s[0:1], {ARG[n]}")
        for n, r in self.srd.items(): k(f"s_mov_b32 {r[2]}, {SZ[n]}", f"s_mov_b32 {r[3]}, 0x20000")
        k(f"v_and_b32 {self.lane}, 63, v0", f"v_lshrrev_b32 {self.wv}, 6, v0", f"v_lshlrev_b32 {self.l16}, 4, {self.lane}",
          f"s_and_b32 {self.sh}, s2, 31", f"s_lshr_b32 {self.sj}, s2, 5", f"v_readfirstlane_b32 {self.sw}, {self.wv}")

    def front(self):
        k, diag, srd = self.k, self.diag, self.srd
        ckv, wuk, wuv, wq, xs, ws = [srd[n] for n in ("ckv", "wuk", "wuv", "wq", "x", "ws")]
        lane, wv, l16, (t0, t1, t2) = self.lane, self.wv, self.l16, self.t
        sh, sj, sw = self.sh, self.sj, self.sw
        S = self.S(); V = Alloc('v', 1, 64)
        self.sxA, self.sxB, self.sD, self.sM = S(), S(), S(), S()
        self.s1 = S.p
        sC, sW, sQ, sm0c, sm0w, st0, st1, sKV, sxa, sxb, sF = [S() for _ in range(11)]
        q = VmQ()
        xr = V(8, 2); vX = V()
        k(f"v_and_b32 {t0}, 7, {lane}", f"v_lshlrev_b32 {t0}, 10, {t0}",
          f"v_lshrrev_b32 {t1}, 3, {lane}", f"v_lshl_add_u32 {t0}, {t1}, 4, {t0}", f"v_lshl_add_u32 {vX}, {wv}, 8, {t0}",
          f"s_lshl_b32 {st0}, s2, 13")
        vC = [V() for _ in range(8)]
        k(f"v_lshrrev_b32 {t0}, 3, {lane}", f"v_lshrrev_b32 {t1}, 4, {lane}",
          f"v_xor_b32 {t1}, {t1}, {lane}", f"v_and_b32 {t1}, 7, {t1}", f"v_lshlrev_b32 {t1}, 4, {t1}",
          f"v_lshl_add_u32 {t0}, {t0}, 10, {t1}", f"v_lshl_add_u32 {t0}, {wv}, 16, {t0}", f"v_xor_b32 {t1}, 64, {t0}")
        for i in range(8):
            ip = [0, 2, 1, 3, 4, 6, 5, 7][i]
            k(f"v_add_u32 {vC[i]}, {8192*ip - 1024*(i%4)}, {t1 if i & 1 else t0}")
        vW = [V() for _ in range(4)]
        k(f"v_bfe_u32 {t0}, {lane}, 2, 2", f"v_lshlrev_b32 {t0}, 13, {t0}",
          f"v_lshrrev_b32 {t1}, 4, {lane}", f"v_lshl_add_u32 {t0}, {t1}, 6, {t0}",
          f"v_and_b32 {t1}, 1, {lane}", f"v_lshl_add_u32 {t0}, {t1}, 5, {t0}",
          f"v_bfe_u32 {t1}, {lane}, 1, 1", f"v_lshl_add_u32 {t0}, {t1}, 4, {t0}",
          f"v_lshl_add_u32 {t0}, {wv}, 17, {t0}", f"v_xor_b32 {t1}, 16, {t0}")
        for i in range(4): k(f"v_add_u32 {vW[i]}, {31744*i}, {t1 if i & 2 else t0}")
        k(f"s_lshl_b32 {sC}, {sj}, 18", f"s_lshl_b32 {sW}, {sh}, 8", f"s_lshl_b32 {sQ}, {sh}, 8",
          f"s_lshl_b32 {sm0c}, {sw}, 13", f"s_lshl_b32 {sm0w}, {sw}, 12", "s_waitcnt lgkmcnt(0)")
        k(f"buffer_load_dwordx4 {xr[0:4]}, {vX}, {xs}, {st0} offen", f"buffer_load_dwordx4 {xr[4:8]}, {vX}, {xs}, {st0} offen offset:128")
        q.issue("x", 2)
        def dmaC(n):
            L = []
            for half in range(2):
                L.append(f"s_add_u32 m0, {sm0c}, {(n & 1)*32768 + 4096*half}")
                L += [f"buffer_load_dwordx4 {vC[4*half+i]}, {ckv}, {sC} offen offset:{1024*i} lds" for i in range(4)]
            L.append(f"s_add_u32 {sC}, {sC}, 128"); q.issue(("C", n), 8); return L
        def dmaW(n):
            L = []
            for mat, sr in enumerate((wuk, wuv)):
                L.append(f"s_add_u32 m0, {sm0w}, {65536 + (n % 3)*32768 + 16384*mat}")
                L += [f"buffer_load_dwordx4 {vW[i]}, {sr}, {sW} offen offset:{1024*i} lds" for i in range(4)]
            L.append(f"s_add_u32 {sW}, {sW}, {64*8192}"); q.issue(("W", n), 8); return L
        QREG = [128, 144, 0, 16, 64, 80, 96, 112]
        def dmaQ(p):
            L = []
            for n in (2*p, 2*p + 1):
                L.append(f"s_add_u32 m0, {sm0w}, {QREG[n]*1024}")
                L += [f"buffer_load_dwordx4 {vW[i]}, {wq}, {sQ} offen offset:{1024*i} lds" for i in range(4)]
                L.append(f"s_add_u32 {sQ}, {sQ}, {64*8192}")
            q.issue(("Q", p), 8); return L
        k(nopm0(dmaC(0)), nopm0(dmaW(0)), nopm0(dmaC(1)), nopm0(dmaW(1)))
        tv = V(); dummy = V()
        k(f"v_lshrrev_b32 {t0}, 1, v0", f"v_and_b32 {t0}, 63, {t0}", f"v_lshlrev_b32 {t0}, 13, {t0}", f"v_and_b32 {t1}, 1, v0", f"v_lshl_add_u32 {tv}, {t1}, 7, {t0}",
          f"s_lshl_b32 {st0}, {sj}, 19", f"s_lshl_b32 {st1}, {sh}, 8", f"s_add_u32 {st0}, {st0}, {st1}")
        labv, labd = k.lab("tv"), k.lab("td")
        k(f"s_cmp_ge_u32 {sw}, 2", f"s_cbranch_scc1 {labv}", f"buffer_load_dword {dummy}, {tv}, {wuk}, {st0} offen", f"s_branch {labd}")
        k.label(labv); k(f"buffer_load_dword {dummy}, {tv}, {wuv}, {st0} offen"); k.label(labd)
        k(f"v_lshlrev_b32 {t0}, 7, v0", f"s_lshl_b32 {st1}, {sj}, 18", f"s_lshr_b32 {sF}, {sh}, 3", f"s_lshl_b32 {sF}, {sF}, 16", f"s_add_u32 {st1}, {st1}, {sF}",
          f"buffer_load_dword {dummy}, {t0}, {ckv}, {st1} offen", f"s_add_u32 {st1}, {st1}, 32768", f"buffer_load_dword {dummy}, {t0}, {ckv}, {st1} offen")
        pc = R('s', S(2).b, 2); here = k.lab("pc")
        k(f"s_getpc_b64 {pc}"); k.label(here)
        k(f"s_bfe_u32 {sF}, s2, 0x20003", f"s_lshl_b32 {sF}, {sF}, 15", f"v_add_u32 {t0}, {sF}, {t0}",
          f"v_min_u32 {t0}, {k.name}_last-{here}, {t0}", f"global_load_dword {dummy}, {t0}, {pc}")
        q.issue("T", 4)
        touch_q = [f"buffer_load_dword {dummy}, {tv}, {wq}, {st0} offen"]
        k(f"v_mov_b32 {t1}, 0", f"v_lshlrev_b32 {t0}, 2, v0", f"s_lshl_b32 {sF}, s2, 7", f"s_add_u32 {sF}, {sF}, {WS_FLAG}",
          "v_cmp_gt_u32 vcc, 32, v0", f"v_mov_b32 {t2}, 0x7ffffff0", "s_nop 0", f"v_cndmask_b32 {t2}, {t2}, {t0}, vcc",
          f"buffer_store_dword {t1}, {t2}, {ws}, {sF} offen sc1",
          f"v_mov_b32 {t1}, -1", f"s_lshl_b32 {sF}, s2, 10", f"s_add_u32 {sF}, {sF}, {WS_STZ}",
          f"buffer_store_dword {t1}, {t0}, {ws}, {sF} offen sc1")
        q.issue("Z", 2)
        rC = [V(), V()]; rW = [V(), V(), V(), V()]
        rQ = [R('v', 192 + i) for i in range(6)]
        k(f"v_and_b32 {t0}, 15, {lane}", f"v_lshrrev_b32 {t1}, 1, {t0}", f"v_lshrrev_b32 {t2}, 4, {lane}",
          f"v_xor_b32 {t1}, {t1}, {t2}", f"v_lshlrev_b32 {t1}, 4, {t1}", f"v_lshl_add_u32 {t0}, {t0}, 7, {t1}",
          f"v_lshrrev_b32 {t1}, 1, {wv}", f"v_lshl_add_u32 {rC[0]}, {t1}, 14, {t0}", f"v_xor_b32 {rC[1]}, 64, {rC[0]}")
        k(f"v_lshlrev_b32 {t0}, 11, {t2}", f"v_bfe_u32 {t1}, {lane}, 2, 2", f"v_lshl_add_u32 {t0}, {t1}, 6, {t0}",
          f"v_and_b32 {t1}, 1, {t2}", f"v_lshl_add_u32 {t0}, {t1}, 5, {t0}",
          f"v_and_b32 {t1}, 1, {lane}", f"v_lshl_add_u32 {rQ[0]}, {t1}, 4, {t0}", f"v_bfe_u32 {t1}, {lane}, 1, 1", f"v_lshl_add_u32 {rQ[0]}, {t1}, 3, {rQ[0]}",
          f"v_xor_b32 {rQ[1]}, 32, {rQ[0]}",
          f"v_and_b32 {t1}, 3, {lane}", f"v_lshl_add_u32 {t0}, {t1}, 3, {t0}",
          f"v_and_b32 {t1}, 1, {wv}", f"v_lshl_add_u32 {t0}, {t1}, 9, {t0}",
          f"v_add_u32 {rW[0]}, 0x10000, {t0}", f"v_xor_b32 {rW[1]}, 32, {rW[0]}",
          f"v_add_u32 {rW[2]}, 0x10000, {rW[0]}", f"v_add_u32 {rW[3]}, 0x10000, {rW[1]}")
        for z in range(2, 6): k(f"v_add_u32 {rQ[z]}, 0x10000, {rQ[z-2]}")
        F = [R('v', 128, 64), R('v', 64, 64)]
        def cf(st, kt): return F[st].sub(4*kt, 4)
        def wf(st, ct): return F[st].sub(32 + 4*ct, 4)
        def reads(i):
            n, ks, st = i >> 1, i & 1, i & 1
            ws_ = n % 3; L = []
            for z in range(8):
                mat, Pl, u = z >> 2, (z >> 1) & 1, z & 1
                for t in range(2):
                    L.append(f"ds_read_b64_tr_b16 {wf(st, z).sub(2*t, 2)}, {rW[2*(ws_ >> 1) + u]} offset:{(ws_ & 1)*32768 + mat*16384 + ks*8192 + t*1024 + Pl*256}")
                L.append(f"ds_read_b128 {cf(st, z)}, {rC[ks]} offset:{(n & 1)*32768 + z*2048}")
            return L
        def acc(kt, ct): return R('a', (kt*8 + ct)*4, 4)
        def mfmas(i):
            st = i & 1; L = []
            for ct in range(8):
                for kt in range(8):
                    d = acc(kt, ct); c = 0 if i == 0 else d
                    if ct < 4: L.append(f"{M16} {d}, {wf(st, ct)}, {cf(st, kt)}, {c}")
                    else:      L.append(f"{M16} {d}, {cf(st, kt)}, {wf(st, ct)}, {c}")
            return L
        xf = V(16); s1, s2_, u0, u1 = V(), V(), V(), V(); pr = R('v', 200, 8); vL = V()
        k(f"s_waitcnt vmcnt({q.need('x')})")
        for z in range(8): k(f"v_lshlrev_b32 {xf[2*z]}, 16, {xr[z]}", f"v_and_b32 {xf[2*z+1]}, 0xffff0000, {xr[z]}")
        k(f"v_add_f32 {s1}, {xf[0]}, {xf[1]}", f"v_mul_f32 {s2_}, {xf[0]}, {xf[0]}", f"v_fmac_f32 {s2_}, {xf[1]}, {xf[1]}")
        for z in range(2, 16): k(f"v_add_f32 {s1}, {s1}, {xf[z]}", f"v_fmac_f32 {s2_}, {xf[z]}, {xf[z]}")
        k("s_nop 1", f"v_add_f32_dpp {s1}, {s1}, {s1} row_ror:8 row_mask:0xf bank_mask:0xf", f"v_add_f32_dpp {s2_}, {s2_}, {s2_} row_ror:8 row_mask:0xf bank_mask:0xf")
        for sw_ in ("v_permlane16_swap_b32", "v_permlane32_swap_b32"):
            k(f"v_mov_b32 {u0}, {s1}", f"v_mov_b32 {u1}, {s2_}", "s_nop 0", f"{sw_} {u0}, {s1}", f"{sw_} {u1}, {s2_}",
              f"v_add_f32 {s1}, {s1}, {u0}", f"v_add_f32 {s2_}, {s2_}, {u1}")
        k(f"v_and_b32 {u0}, 7, {lane}", f"v_lshlrev_b32 {u0}, 5, {u0}", f"v_add_u32 {u0}, 0x20000, {u0}", f"v_lshl_add_u32 {vL}, {wv}, 12, {u0}",
          f"v_bfe_u32 {u1}, {lane}, 3, 2", f"v_lshl_add_u32 {u0}, {u1}, 12, {u0}", f"v_lshl_add_u32 {u0}, {wv}, 2, {u0}",
          f"ds_write2_b32 {u0}, {s1}, {s2_} offset0:0 offset1:4")
        ln2 = [f"v_add_f32 {s1}, {pr[0]}, {pr[1]}", f"v_add_f32 {s2_}, {pr[4]}, {pr[5]}", f"v_add_f32 {u0}, {pr[2]}, {pr[3]}", f"v_add_f32 {u1}, {pr[6]}, {pr[7]}",
               f"v_add_f32 {s1}, {s1}, {u0}", f"v_add_f32 {s2_}, {s2_}, {u1}",
               f"v_mul_f32 {s1}, {f2u(1/512)}, {s1}", f"v_mul_f32 {s2_}, {f2u(1/512)}, {s2_}",
               f"v_fma_f32 {s2_}, -{s1}, {s1}, {s2_}", f"v_max_f32 {s2_}, 0, {s2_}", f"v_add_f32 {s2_}, {f2u(1e-5)}, {s2_}",
               f"v_rsq_f32 {s2_}, {s2_}", "v_nop", f"v_mul_f32 {s2_}, {f2u(QSCALE)}, {s2_}", f"v_mul_f32 {s1}, {s1}, {s2_}"]
        for z in range(16): ln2 += [f"v_fma_f32 {xf[z]}, {xf[z]}, {s2_}, -{s1}"]
        for z in range(8): ln2 += [f"v_cvt_pk_bf16_f32 {xr[z]}, {xf[2*z]}, {xf[2*z+1]}"]
        ln2 += [f"v_lshrrev_b32 {u0}, 3, {lane}", f"v_lshlrev_b32 {u0}, 8, {u0}", f"v_and_b32 {u1}, 7, {lane}", f"v_lshl_add_u32 {u0}, {u1}, 4, {u0}",
                f"v_lshl_add_u32 {vX}, {wv}, 12, {u0}"]
        ln3 = [f"s_lshr_b32 {sF}, s2, 1", f"s_lshl_b32 {sF}, {sF}, 14", f"s_and_b32 {st1}, s2, 1", f"s_lshl_b32 {st1}, {st1}, 7", f"s_add_u32 {sF}, {sF}, {st1}",
               f"buffer_store_dwordx4 {xr[0:4]}, {vX}, {ws}, {sF} offen sc1", f"buffer_store_dwordx4 {xr[4:8]}, {vX}, {ws}, {sF} offen offset:2048 sc1"]
        X = R('v', 128, 64); Wr = R('v', 200, 24); NWR = 6; LW = 4
        tm = R('v', 224, 8); ob = [R('v', 232, 4), R('v', 236, 4)]
        vK, vV, vXb, vP, vPd = R('v', 198), R('v', 199), R('v', 240), R('v', 241), R('v', 242)
        setup = [f"v_lshrrev_b32 {t2}, 4, {lane}",
          f"v_bfe_u32 {t0}, {lane}, 3, 1", f"v_lshlrev_b32 {t0}, 8, {t0}", f"v_and_b32 {t1}, 7, {lane}", f"v_lshl_add_u32 {t0}, {t1}, 4, {t0}",
          f"v_lshrrev_b32 {t1}, 1, {wv}", f"v_lshl_add_u32 {t0}, {t1}, 16, {t0}",
          f"v_lshl_add_u32 {vK}, {t2}, 9, {t0}", f"v_and_b32 {t1}, 1, {wv}", f"v_lshl_add_u32 {vK}, {t1}, 12, {vK}",
          f"v_lshl_add_u32 {vV}, {t1}, 11, {t0}", f"v_and_b32 {t1}, 1, {t2}", f"v_lshl_add_u32 {vV}, {t1}, 9, {vV}",
          f"v_lshrrev_b32 {t1}, 1, {t2}", f"v_lshl_add_u32 {vV}, {t1}, 12, {vV}",
          f"v_add_u32 {vXb}, 16384, {l16}", f"v_mov_b32 {vP}, 0",
          f"s_lshl_b32 {st0}, {sh}, 20", f"s_add_u32 {st0}, {st0}, {WS_KV}",
          [f"s_add_u32 {self.kv[0]}, {ws[0]}, {st0}", f"s_addc_u32 {self.kv[1]}, {ws[1]}, 0"],
          f"s_sub_u32 {st1}, 16, {sj}", f"s_lshl_b32 {self.kv[2]}, {st1}, 16", f"s_mov_b32 {self.kv[3]}, 0x20000",
          f"s_lshl_b32 {st1}, {sj}, 17", f"s_add_u32 {sKV}, {st0}, {st1}",
          f"s_lshl_b32 {st0}, {sj}, 2", f"s_add_u32 {self.sxA}, {st0}, {sw}", f"s_sub_u32 {st0}, 60, {st0}", f"s_add_u32 {self.sxB}, {st0}, {sw}",
          f"s_lshl_b32 {sxa}, {self.sxA}, 15", f"s_lshl_b32 {sxb}, {self.sxB}, 15"]
        def xld(i):
            r = X.sub(16*(i % 4), 16); q.issue(("X", i), 4)
            L = [f"buffer_load_dwordx4 {r.sub(4*z, 4)}, {vXb if z & 1 else l16}, {ws}, {sxa if z >> 1 else sxb} offen offset:{1024*(i % 4)} sc1" for z in range(4)]
            if i % 4 == 3: L += [f"s_add_u32 {sxa}, {sxa}, 4096", f"s_add_u32 {sxb}, {sxb}, 4096"]
            return L
        def qread(f):
            i, dt = f >> 3, f & 7; base = QREG[i >> 1]*1024; P, u = dt >> 1, dt & 1
            r = rQ[2*(base >> 16) + u]; base &= 0xffff
            return [f"ds_read_b64_tr_b16 {Wr.sub(4*(f % NWR) + 2*t, 2)}, {r} offset:{base + (i & 1)*8192 + t*1024 + P*256}" for t in range(2)]
        k(f"s_waitcnt vmcnt({q.need(('C', 0), ('W', 0))}) lgkmcnt(0)", "s_barrier")
        k(diag.stamp("tile0"))
        k(f"ds_read_b128 {pr[0:4]}, {vL}", f"ds_read_b128 {pr[4:8]}, {vL} offset:16")
        k(reads(0))
        for i in range(16):
            sc = Sched(mfmas(i), 8)
            if i & 1:
                n = (i + 1) // 2
                tags = [("C", n), ("W", n)] if n < 8 else [("Q", 0), ("Q", 1)]
                if i == 5: tags += ["XN", "Z"]
                if i == 13: tags += ["P0"]
                k(f"s_waitcnt vmcnt({q.need(*tags)}) lgkmcnt(0)", "s_barrier")
            else: k("s_waitcnt lgkmcnt(0)")
            if FINE: k(diag.stamp(f"a{i}"))
            if i == 5:
                self.arrive(srd["dbg"], 0);
            if i == 13: self.poll_check(vPd, vP, srd["dbg"], 0, 256)
            if i < 15:
                for z, x in enumerate(reads(i + 1)): sc.fix(2*z + 1, x)
            if i == 1:
                sc.scatter(ln3, 0, 14, mingap=2); q.issue("XN", 2)
            if i == 11: sc.fix(0, self.poll_issue(vPd, vP, srd["dbg"], 0)); q.issue("P0")
            if i == 15:
                xl = xld(0) + xld(1) + xld(2)
                sc.scatter(xl, 0, 24)
            if i & 1: d = dmaC((i + 1)//2 + 1) if i < 13 else dmaQ(1 if i == 13 else 3)
            else: d = dmaW(i//2 + 2) if i < 12 else dmaQ(0 if i == 12 else 2)
            lo = 14 if i == 1 else 24 if i == 15 else 2
            pos = [lo + ((60 - lo)*z // len(d)) // 2 * 2 for z in range(len(d))]
            for z, x in enumerate(d): sc.fix(pos[z], x)
            if i == 3: sc.fix(62, touch_q); q.issue("T")
            if i == 0: sc.flow([(x, 0) for x in ln2])
            if i == 6:
                for z, x in enumerate(setup): sc.fix(2*z, x, where="val")
            if i == 15:
                for f in range(LW):
                    for t, x in enumerate(qread(f)): sc.fix(41 + 4*f + 2*t, x)
            k(sc.out())
        k(diag.stamp("kvproj"))
        chunks = []
        def chunk(ta, tb, voff, soff, imm):
            oo = ob[len(chunks) % 2]; L = []
            for e in range(4): L.append(f"v_accvgpr_read_b32 {tm[e]}, {ta[e]}")
            for e in range(4): L.append(f"v_accvgpr_read_b32 {tm[4+e]}, {tb[e]}")
            for e in range(4): L.append(f"v_cvt_pk_bf16_f32 {oo[e]}, {tm[2*e]}, {tm[2*e+1]}")
            chunks.append((soff, L, f"buffer_store_dwordx4 {oo}, {voff}, {ws}, {st1} offen offset:{imm} sc1"))
        for p in range(4):
            for b in range(2):
                for Pl in range(2):
                    chunk(acc(2*p + b, 2*Pl), acc(2*p + b, 2*Pl + 1), vK, (p >> 1)*32768 + (p & 1)*8192, Pl*2048 + b*128)
        for p in range(4):
            for Pl in range(2):
                for u in range(2):
                    chunk(acc(2*p, 4 + 2*Pl + u), acc(2*p + 1, 4 + 2*Pl + u), vV, 16384 + (p >> 1)*32768 + (p & 1)*8192, Pl*1024 + u*128)
        def qacc(qt, dt): return R('v', 32*qt + 4*dt, 4)
        ci = 0; cur = None
        for i in range(16):
            mf = []
            for dt in range(8):
                for qt in range(4):
                    d = qacc(qt, dt)
                    mf.append(f"{M16} {d}, {Wr.sub(4*((8*i + dt) % NWR), 4)}, {X.sub(16*(i % 4) + 4*qt, 4)}, {0 if i == 0 else d}")
            sc = Sched(mf, 8)
            tags = [("X", i)]
            if i == 7: tags += [("Q", 2), ("Q", 3)]
            if i == 13: tags += ["ST"]
            k(f"s_waitcnt vmcnt({q.need(*tags)}) lgkmcnt({2*(LW - 2)})")
            if i in (7, 13): k("s_barrier")
            if FINE: k(diag.stamp(f"q{i}"))
            if i == 13:
                k(f"s_lshl_b32 {sF}, {sh}, 7", f"s_add_u32 {sF}, {sF}, {WS_FLAG + F_KV*128}"); self.arrive(ws, sF)
            for dt in range(8):
                f = 8*i + dt + LW
                if f < 128:
                    a_, b_ = qread(f); sc.fix(4*dt, a_); sc.fix(4*dt + 1, b_)
                if dt % 2 == 0 and dt > 0:
                    issued = min(8*i + dt + LW, 128)
                    sc.fix(4*dt - 1, f"s_waitcnt lgkmcnt({2*max(0, issued - (8*i + dt + 2))})")
            ev = []
            if i + 3 < 16:
                xl = xld(i + 3); q.q = q.q[:-4]
                for z, x in enumerate(xl):
                    g = 2 + 4*z
                    sc.fix(g, x)
                    if z < 4: ev.append((g, ("X", i + 3)))
            for c in range(3):
                if ci < 32:
                    soff, L, st_ = chunks[ci]; ci += 1
                    lo, hi = (0, 10, 21)[c], (10, 21, 31)[c]
                    if i == 0 and c == 0: lo = 2
                    if soff != cur: sc.fix(hi - 1, f"s_add_u32 {st1}, {sKV}, {soff}"); cur = soff
                    sc.flow([(x, 0) for x in L], lo, hi)
                    sc.fix(hi, st_); ev.append((hi + 0.5, "ST"))
            if i == 15: sc.fix(8, self.poll_issue(vPd, vP, ws, sF)); ev.append((8, "P1"))
            for g, tag in sorted(ev): q.issue(tag)
            k(sc.out())
        k(diag.stamp("qproj"))
        k(f"s_waitcnt vmcnt({q.need('P1')})")
        self.poll_check(vPd, vP, ws, sF, 8)
        k(diag.stamp("kvwait"))
        self.att_regs()
        k(f"v_lshl_add_u32 {self.vd[0]}, {wv}, 13, {l16}", f"v_add_u32 {self.vd[1]}, 4096, {self.vd[0]}",
          f"s_add_u32 m0, {sm0w}, {144*1024}", f"s_add_u32 {self.sM}, {sm0c}, 32768", f"s_mov_b32 {self.sD}, 16384")
        k([f"buffer_load_dwordx4 {l16}, {self.kv}, {sm0w} offen offset:{1024*i} sc1 lds" for i in range(4)])
        k(nopm0(self.dma_c(0)), nopm0(self.dma_c(1)), f"s_xor_b32 {self.sM}, {self.sM}, 0x10000")
        tq = R('v', 128, 16); z = 0; pend = []
        for Xb, q0 in (('B', 0), ('A', 2)):
            for dt in range(8):
                P, u = dt >> 1, dt & 1
                r = tq.sub(4*(z % 4), 4); z += 1
                a0, a1 = qacc(q0, dt), qacc(q0 + 1, dt)
                k(f"v_cvt_pk_bf16_f32 {r[0]}, {a0[0]}, {a0[1]}", f"v_cvt_pk_bf16_f32 {r[1]}, {a0[2]}, {a0[3]}",
                  f"v_cvt_pk_bf16_f32 {r[2]}, {a1[0]}, {a1[1]}", f"v_cvt_pk_bf16_f32 {r[3]}, {a1[2]}, {a1[3]}")
                k(pend)
                Q = self.Q[Xb]
                pend = [f"v_permlane16_swap_b32 {r[0]}, {r[2]}", f"v_permlane16_swap_b32 {r[1]}, {r[3]}",
                        f"v_accvgpr_write_b32 {Q[8*P + 2*u]}, {r[0]}", f"v_accvgpr_write_b32 {Q[8*P + 2*u + 1]}, {r[1]}",
                        f"v_accvgpr_write_b32 {Q[8*P + 4 + 2*u]}, {r[2]}", f"v_accvgpr_write_b32 {Q[8*P + 4 + 2*u + 1]}, {r[3]}"]
        k(pend)

    def att_regs(self):
        self.Sb = {('B', 0): R('v', 0, 32), ('B', 1): R('v', 32, 32), ('A', 0): R('v', 64, 32), ('A', 1): R('v', 96, 32)}
        self.PB0 = [R('v', 128, 4), R('v', 132, 4)]
        self.PB = R('v', 136, 12); self.PA = R('v', 148, 16)
        self.negm = {'B': R('v', 164, 16), 'A': R('v', 180, 16)}
        self.tmp = R('v', 196, 8)
        V = Alloc('v', 204, 240)
        self.l = {'A': V(), 'B': V()}; self.ls = {'A': V(), 'B': V()}; self.thrq = {'A': V(), 'B': V()}
        self.rd = V(); self.vd = [V(), V()]; self.ninf = V(); self.vst = V(); self.tch = V(); self.dummy = V()
        self.O = {'A': R('a', 0, 64), 'B': R('a', 64, 64)}
        self.Q = {'A': R('a', 128, 32), 'B': R('a', 160, 32)}
        self.ring = R('a', 192, 64)
    def P(self, X, ks, par):
        if X == 'A': return self.PA.sub(4*ks, 4)
        return self.PB0[par] if ks == 0 else self.PB.sub(4*(ks - 1), 4)
    def fr(self, f): return self.ring.sub(4*(f % 16), 4)
    def dma_c(self, par):
        L = []
        for hf in range(2):
            L.append(f"s_add_u32 m0, {self.sM}, {par*32768 + hf*4096}")
            L += [f"buffer_load_dwordx4 {self.vd[hf]}, {self.kv}, {self.sD} offen offset:{1024*i} sc1 lds" for i in range(4)]
        L.append(f"s_add_u32 {self.sD}, {self.sD}, 32768")
        return L
    def maskinit(self, X, par, src):
        L = []; Sx = self.Sb[(X, par)]; th = self.t[2]
        L.append(f"v_subrev_u32 {th}, {self.sT}, {self.thrq[X]}")
        items = []
        for e in range(32):
            off = 32*(e >> 4) + 8*((e & 15) >> 2) + (e & 3)
            items.append((f"v_cmp_le_i32 {self.mk[e % 4]}, {off}, {th}", f"v_cndmask_b32 {Sx[e]}, {self.ninf}, {src}, {self.mk[e % 4]}"))
        for e in range(34):
            L.append(items[e][0] if e < 32 else "v_nop")
            if e >= 2: L.append(items[e-2][1])
        return L
    def softmax(self, blocks, par, pv_last):
        el = [(X, 8*ks + e) for ks in range(4) for X in blocks for e in range(8)]
        it = []; n = len(el); tm = self.tmp
        def post(z):
            X, e = el[z]; o = []
            if e == 1: o.append((f"v_add_f32 {self.ls[X]}, {tm[(z-1) % 8]}, {tm[z % 8]}", 0))
            elif e > 1: o.append((f"v_add_f32 {self.ls[X]}, {self.ls[X]}, {tm[z % 8]}", 0))
            if e & 1:
                ks = e >> 3
                early = 0 if (X == 'B' and ks == 0) else pv_last.get((X, ks), 0)
                o.append((f"v_cvt_pk_bf16_f32 {self.P(X, ks, par)[(e & 7) >> 1]}, {tm[(z-1) % 8]}, {tm[z % 8]}", early))
            return o
        for z in range(n):
            X, e = el[z]
            it.append((f"v_exp_f32 {tm[z % 8]}, {self.Sb[(X, par)][e]}", 0))
            if z >= 1: it += post(z - 1)
        return it + post(n - 1)
    def rdfrag(self, grp, f):
        kind, sp = grp
        return f"ds_read_b128 {self.fr(f)}, {self.rd} offset:{sp*32768 + (16384 if kind == 'K' else 0) + 1024*f}"
    def iteration(self, par, pv="", sm="", qk="", mask="", nxt=None, extra=None, name="", newslot_next=False, dma=True, zero=False):
        k = self.k
        mf = []; use = []; pv_last = {}
        G = ([('V', par ^ 1)] if pv else []) + ([('K', par)] if qk else [])
        gi = 0
        if pv:
            for ks in range(4):
                for dt in range(4):
                    for z, X in enumerate(pv):
                        d = self.O[X].sub(16*dt, 16)
                        mf.append(f"{M32} {d}, {self.fr(4*ks + dt)}, {self.P(X, ks, par ^ 1)}, {d}")
                        use.append(16*gi + 4*ks + dt if z == 0 else None)
                        pv_last[(X, ks)] = len(mf) - 1
            gi += 1
        qk0 = len(mf)
        if qk:
            for kt in range(2):
                for s_ in range(8):
                    for z, X in enumerate(qk):
                        d = self.Sb[(X, par ^ 1)].sub(16*kt, 16)
                        c = d if (s_ > 0 or X in mask) else (0 if zero else self.negm[X])
                        mf.append(f"{M32} {d}, {self.fr(8*kt + s_)}, {self.Q[X].sub(4*s_, 4)}, {c}")
                        use.append(16*gi + 8*kt + s_ if z == 0 else None)
            gi += 1
        sc = Sched(mf)
        allg = G + ([nxt] if nxt else []); nf = 16*len(G); bar_at = None
        for i, u in enumerate(use):
            if u is None: continue
            F = u + LA
            if F >= nf + (LA if nxt else 0): continue
            grp = allg[F // 16]
            if F % 16 == 0 and ((grp[0] == 'K') or (F >= nf and newslot_next)):
                sc.fix(i, "s_waitcnt vmcnt(8)", "s_barrier"); bar_at = i
                if grp[1] == 0: sc.fix(i - 1, f"v_xor_b32 {self.rd}, 0x10000, {self.rd}", where="post")
                dpar = grp[1]
            sc.fix(i, self.rdfrag(grp, F % 16))
        for i, u in enumerate(use):
            if u is None or u % 4: continue
            n = max(0, min(u + LA, nf + (LA if nxt else 0)) - (u + 4))
            if i == 0: k(f"s_waitcnt lgkmcnt({n})")
            else: sc.fix(i - 1, f"s_waitcnt lgkmcnt({n})")
        if bar_at is not None and dma:
            d = self.dma_c(dpar)
            if dpar == 1: d.append(f"s_xor_b32 {self.sM}, {self.sM}, 0x10000")
            hi = min(len(mf), bar_at + 1 + 2*len(d))
            if hi - bar_at - 1 >= len(d): sc.scatter(d, bar_at + 1, hi)
            else: sc.scatter(nopm0(d), bar_at + 1, hi, mingap=0)
        if mask:
            m = []
            for X in mask: m += self.maskinit(X, par ^ 1, 0 if zero else self.negm[X][0])
            if qk0 >= 8: sc.flow([(x, 0) for x in m], 0, qk0 - 1)
            else: k(m, "s_nop 1")
        if qk: sc.fix(len(mf) - 1, f"s_add_u32 {self.sT}, {self.sT}, 64")
        if extra: extra(sc)
        if sm:
            it = self.softmax(sm, par, pv_last)
            if len(sm) == 2: it.append((f"v_max_f32 {self.t[0]}, {self.ls['A']}, {self.ls['B']}", 0)); cv = self.t[0]
            else: cv = self.ls[sm]
            it.append((f"v_cmp_lt_f32 vcc, {self.sthr}, {cv}", 0))
            sc.flow(it)
        k(sc.out())
        if sm:
            lr, lb = k.lab("rare"), k.lab("back")
            k(f"s_cbranch_vccnz {lr}"); k.label(lb)
            for X in sm: k(f"v_add_f32 {self.l[X]}, {self.l[X]}, {self.ls[X]}")
            self.rare.append((lr, lb, sm, par))
    def rowmax(self, Sx, dst):
        t1 = self.t[1]
        L = [f"v_max3_f32 {dst}, {Sx[0]}, {Sx[1]}, {Sx[2]}", f"v_max3_f32 {t1}, {Sx[3]}, {Sx[4]}, {Sx[5]}"]
        for z in range(6, 32, 4):
            L.append(f"v_max3_f32 {dst}, {dst}, {Sx[z]}, {Sx[z+1]}")
            if z + 3 < 32: L.append(f"v_max3_f32 {t1}, {t1}, {Sx[z+2]}, {Sx[z+3]}")
        L += [f"v_max_f32 {dst}, {dst}, {t1}", f"v_mov_b32 {t1}, {dst}", "s_nop 1", f"v_permlane32_swap_b32 {t1}, {dst}", f"v_max_f32 {dst}, {dst}, {t1}"]
        return L
    def emit_rare(self):
        k = self.k; subs = {}; rets = {}
        for lr, lb, sm, par in self.rare:
            k.label(lr)
            for X in sm:
                sub = subs.setdefault((X, par), k.lab(f"fix{X}{par}"))
                here = k.lab("pc"); after = k.lab("ret")
                k(f"s_getpc_b64 {self.tgt}"); k.label(here)
                k(f"s_add_u32 {self.tgt[0]}, {self.tgt[0]}, {sub}-{here}", f"s_addc_u32 {self.tgt[1]}, {self.tgt[1]}, 0",
                  f"s_swappc_b64 {self.ret}, {self.tgt} ; ->{sub}")
                k.label(after); rets.setdefault((X, par), []).append(after)
            k(f"s_branch {lb}")
        for (X, par), sub in subs.items():
            k.label(sub)
            Sc, Sn = self.Sb[(X, par)], self.Sb[(X, par ^ 1)]; d, f = self.t[0], self.t[2]; tm = self.tmp
            k("s_nop 15", self.rowmax(Sc, d))
            k(f"v_max_f32 {d}, 0, {d}", f"v_sub_f32 {f}, 0, {d}", f"v_exp_f32 {f}, {f}")
            for e in range(16): k(f"v_sub_f32 {self.negm[X][e]}, {self.negm[X][e]}, {d}")
            for e in range(32): k(f"v_sub_f32 {Sc[e]}, {Sc[e]}, {d}", f"v_sub_f32 {Sn[e]}, {Sn[e]}, {d}")
            k(f"v_mul_f32 {self.l[X]}, {self.l[X]}, {f}")
            for e in range(64):
                k(f"v_accvgpr_read_b32 {tm[0]}, {self.O[X][e]}", f"v_mul_f32 {tm[0]}, {tm[0]}, {f}", f"v_accvgpr_write_b32 {self.O[X][e]}, {tm[0]}")
            k([x for x, _ in self.softmax(X, par, {})])
            k("s_nop 1", f"s_setpc_b64 {self.ret} ; " + " ".join("->" + r for r in rets[(X, par)]))
    def epilogue(self, X):
        k, t, st, tm = self.k, self.t, self.st, self.tmp
        sx = self.sxA if X == 'A' else self.sxB; l = self.l[X]
        k(f"v_mov_b32 {t[0]}, {l}", f"s_lshl_b32 {st[0]}, {sx}, 18", f"s_lshl_b32 {st[1]}, {self.sh}, 12",
          f"v_permlane32_swap_b32 {t[0]}, {l}", f"s_add_u32 {st[0]}, {st[0]}, {st[1]}", f"s_add_u32 {st[0]}, {st[0]}, {WS_CTX}",
          f"v_add_f32 {t[0]}, {t[0]}, {l}", f"v_rcp_f32 {t[0]}, {t[0]}", "s_nop 7")
        ob = self.Sb[(X, 0)]
        for c in range(8):
            o = ob.sub(4*(c % 4), 4)
            for e in range(8): k(f"v_accvgpr_read_b32 {tm[e]}, {self.O[X][8*c + e]}")
            for e in range(8): k(f"v_mul_f32 {tm[e]}, {tm[e]}, {t[0]}")
            for e in range(4): k(f"v_cvt_pk_bf16_f32 {o[e]}, {tm[2*e]}, {tm[2*e+1]}")
            k(f"buffer_store_dwordx4 {o}, {self.vst}, {self.srd['ws']}, {st[0]} offen offset:{512*c} sc1")
    def attention(self):
        k, t, lane, srd = self.k, self.t, self.lane, self.srd
        S = Alloc('s', self.s1, 96)
        self.sT, self.sN, self.sthr = S(), S(), S(); self.st = st = [S(), S()]
        self.mk = [S(2), S(2), S(2), S(2)]; self.ret = S(2); self.tgt = S(2)
        it = self.iteration; Vg = lambda p: ('V', p)
        k(f"v_add_u32 {self.rd}, 0x18000, {self.l16}", f"s_mov_b32 {self.sthr}, {f2u(self.thr)}", f"v_mov_b32 {self.ninf}, 0xff800000",
          f"v_and_b32 {t[0]}, 31, {lane}", f"v_lshrrev_b32 {t[1]}, 5, {lane}", f"v_lshlrev_b32 {t[1]}, 2, {t[1]}", f"v_sub_u32 {t[0]}, {t[0]}, {t[1]}",
          f"s_lshl_b32 {st[0]}, {self.sxA}, 5", f"s_lshl_b32 {st[1]}, {self.sxB}, 5",
          f"v_add_u32 {self.thrq['A']}, {st[0]}, {t[0]}", f"v_add_u32 {self.thrq['B']}, {st[1]}, {t[0]}", f"s_mov_b32 {self.sT}, 0")
        k("s_waitcnt vmcnt(16)", "s_barrier")
        for f in range(LA): k(self.rdfrag(('K', 1), f))
        init = [f"v_bfe_u32 {t[0]}, {lane}, 2, 1", f"v_lshlrev_b32 {t[0]}, 17, {t[0]}",
                f"v_lshrrev_b32 {t[1]}, 5, {lane}", f"v_lshl_add_u32 {t[0]}, {t[1]}, 8, {t[0]}",
                f"v_bfe_u32 {t[1]}, {lane}, 3, 2", f"v_lshl_add_u32 {t[0]}, {t[1]}, 6, {t[0]}",
                f"v_and_b32 {t[1]}, 3, {lane}", f"v_lshl_add_u32 {self.vst}, {t[1]}, 4, {t[0]}",
                f"v_lshl_add_u32 {t[0]}, {self.wv}, 6, {lane}", f"v_lshlrev_b32 {self.tch}, 7, {t[0]}"]
        for X in "AB":
            init.append(f"v_mov_b32 {self.l[X]}, 0")
            for e in range(64): init.append(f"v_accvgpr_write_b32 {self.O[X][e]}, 0")
        it(1, qk="BA", mask="A", nxt=('K', 0), name="t-1", zero=True, extra=lambda sc: sc.flow([(x, 0) for x in init]))
        k("s_nop 7", "s_nop 3")
        for X in "BA":
            d = t[0]; Sx = self.Sb[(X, 0)]
            k(self.rowmax(Sx, d))
            for e in range(16): k(f"v_sub_f32 {self.negm[X][e]}, 0, {d}")
            for e in range(32): k(f"v_sub_f32 {Sx[e]}, {Sx[e]}, {d}")
        k(f"s_lshl_b32 {st[0]}, s2, 15", f"buffer_load_dword {self.dummy}, {self.tch}, {srd['wsp']}, {st[0]} offen")
        l2, l3, ld = k.lab("t2"), k.lab("t3"), k.lab("td")
        k(f"s_cmp_ge_u32 {self.sw}, 2", f"s_cbranch_scc1 {l2}",
          f"s_lshl_b32 {st[0]}, s2, 14", f"buffer_load_dword {self.dummy}, {self.tch}, {srd['wo']}, {st[0]} offen", f"s_branch {ld}")
        k.label(l2)
        k(f"v_lshlrev_b32 {self.tch}, 7, {lane}", f"s_lshl_b32 {st[0]}, s2, 13", f"s_cmp_eq_u32 {self.sw}, 3", f"s_cbranch_scc1 {l3}",
          f"buffer_load_dword {self.dummy}, {self.tch}, {srd['win']}, {st[0]} offen", f"s_branch {ld}")
        k.label(l3)
        k(f"buffer_load_dword {self.dummy}, {self.tch}, {srd['wout']}, {st[0]} offen")
        k.label(ld)
        k(self.diag.stamp("attpro"))
        L0m, LdA, LdA7, LdB, Lp1, Lm1, Lp2 = [k.lab(x) for x in ("i0m", "drA", "drA7", "drB", "p1", "m1", "p2")]
        k(f"s_cmp_eq_u32 {self.sj}, 0", f"s_cbranch_scc1 {L0m}")
        it(0, sm="BA", qk="BA", nxt=Vg(0), name="t0")
        k(f"s_sub_u32 {self.sN}, {self.sj}, 1", f"s_cmp_eq_u32 {self.sN}, 0", f"s_cbranch_scc1 {Lm1}")
        k(".p2align 3"); k.label(Lp1)
        it(1, pv="BA", sm="BA", qk="BA", nxt=Vg(1), name="p1odd")
        it(0, pv="BA", sm="BA", qk="BA", nxt=Vg(0), name="p1even", extra=lambda sc: sc.fix(2, f"s_sub_u32 {self.sN}, {self.sN}, 1"))
        k(f"s_cmp_lg_u32 {self.sN}, 0", f"s_cbranch_scc1 {Lp1}")
        k.label(Lm1)
        it(1, pv="BA", sm="BA", qk="BA", mask="A", nxt=Vg(1), name="m1odd")
        it(0, pv="BA", sm="BA", qk="BA", mask="A", nxt=Vg(0), name="m1even")
        k(f"s_cmp_eq_u32 {self.sj}, 7", f"s_cbranch_scc1 {LdA7}")
        k.label(LdA)
        it(1, pv="BA", sm="BA", qk="B", nxt=Vg(1), name="dAodd")
        it(0, pv="BA", sm="B", qk="B", nxt=Vg(0), name="dAeven")
        self.epilogue('A')
        k(f"s_lshl_b32 {self.sN}, {self.sj}, 1", f"s_sub_u32 {self.sN}, 13, {self.sN}")
        k(".p2align 3"); k.label(Lp2)
        it(1, pv="B", sm="B", qk="B", nxt=Vg(1), name="p2odd")
        it(0, pv="B", sm="B", qk="B", nxt=Vg(0), name="p2even", extra=lambda sc: sc.fix(2, f"s_sub_u32 {self.sN}, {self.sN}, 1"))
        k(f"s_cmp_lg_u32 {self.sN}, 0", f"s_cbranch_scc1 {Lp2}")
        it(1, pv="B", sm="B", qk="B", mask="B", nxt=Vg(1), name="m2odd")
        it(0, pv="B", sm="B", qk="B", mask="B", nxt=Vg(0), name="m2even")
        k.label(LdB)
        it(1, pv="B", sm="B", nxt=Vg(1), newslot_next=True, dma=False, name="dBodd")
        it(0, pv="B", name="dBeven")
        k(self.diag.stamp("attn"))
        k("s_nop 3")
        self.epilogue('B')
        def cold():
            k.label(L0m)
            it(0, sm="BA", qk="BA", mask="A", nxt=Vg(0), name="t0m")
            k(f"s_branch {LdA}")
            k.label(LdA7)
            it(1, pv="BA", sm="BA", qk="B", mask="B", nxt=Vg(1), name="dA7odd")
            it(0, pv="BA", sm="B", qk="B", mask="B", nxt=Vg(0), name="dA7even")
            self.epilogue('A')
            k(f"s_branch {LdB}")
            self.emit_rare()
        self.cold = cold

    def build(self):
        from tail import tail
        k = self.k
        self.entry(); self.front(); self.attention()
        tail(self)
        if self.diag.on: k("s_waitcnt vmcnt(0)", f"v_lshl_add_u32 v0, {self.wv}, 6, {self.lane}")
        self.diag.flush()
        k.label(k.name + "_end"); k("s_endpgm")
        self.cold()
        k.label(k.name + "_last"); k("s_endpgm")
        return k

HDR = open("sequential_preLN__compressed_kv_cla__mixer_gmlp__prompt.s.ref").read().split("; Override launch")[0]
def write_single(path, k):
    o = [HDR.rstrip("\n"), "; @launch grid=(256,1,1) block=(256,1,1) lds=163840", '.amdgcn_target "amdgcn-amd-amdhsa--gfx950"', ".text",
         k.text(), '.section .rodata,"a"', ".p2align 6", k.desc()]
    open(path, "w").write("\n".join(o))
def build(path, dg, **kw):
    k = Mega(dg, **kw).build()
    assert not check(k)
    write_single(path, k)
    if dg: json.dump([["mega", 0, k.diag.names, 256]], open(path[:-2] + ".json", "w"))
if __name__ == "__main__":
    build("../dev/mega_dg.s", True)
    build("../dev/mega_rare.s", True, thr=3.0)
    build("../dev/mega.s", False)
```

```python
import re, sys

def vr(b, n=1, f='v'):
    return f"{f}{b}" if n == 1 else f"{f}[{b}:{b+n-1}]"
def v(b, n=1): return vr(b, n, 'v')
def a(b, n=1): return vr(b, n, 'a')
def s(b, n=1): return vr(b, n, 's')

class R:
    def __init__(self, f, b, n=1): self.f, self.b, self.n = f, b, n
    def __str__(self): return vr(self.b, self.n, self.f)
    __repr__ = __str__
    def __format__(self, spec): return str(self)
    def __getitem__(self, i):
        if isinstance(i, slice):
            st = i.start or 0; en = self.n if i.stop is None else i.stop
            assert 0 <= st < en <= self.n, (self, i)
            return R(self.f, self.b + st, en - st)
        assert 0 <= i < self.n, (self, i)
        return R(self.f, self.b + i, 1)
    def sub(self, st, n): return self[st:st+n]

class Alloc:
    def __init__(self, f, lo, hi): self.f, self.lo, self.hi, self.p = f, lo, hi, lo
    def __call__(self, n=1, align=None):
        al = align or (1 if n == 1 else 2 if (self.f != 's' or n == 2) else 4)
        self.p = (self.p + al - 1) // al * al
        r = R(self.f, self.p, n); self.p += n
        assert self.p <= self.hi, f"out of {self.f} regs ({self.p} > {self.hi})"
        return r

class Kern:
    def __init__(self, name, vgpr=512, acc=256, sgpr=102):
        self.name, self.vgpr, self.acc, self.sgpr = name, vgpr, acc, sgpr
        self.L = []
        self.nlab = 0
    def __call__(self, *lines):
        for t in lines:
            if isinstance(t, (list, tuple)): self(*t); continue
            for l in t.split("\n"):
                l = l.strip()
                if l: self.L.append(l)
    def lab(self, base="L"):
        self.nlab += 1
        return f"L{base}{self.nlab}" if len(self.name) > 40 else f"{self.name}_{base}{self.nlab}"
    def label(self, n): self.L.append(n + ":")
    def text(self):
        o = [f".globl {self.name}", ".p2align 8", f".type {self.name},@function", f"{self.name}:"]
        for l in self.L:
            o.append(l if l.endswith(":") or l.startswith(".") else " " + l)
        return "\n".join(o) + "\n"
    def desc(self):
        return f""".amdhsa_kernel {self.name}
  .amdhsa_next_free_vgpr {self.vgpr}
  .amdhsa_next_free_sgpr {self.sgpr}
  .amdhsa_accum_offset {self.acc}
  .amdhsa_group_segment_fixed_size 0
  .amdhsa_kernarg_size 112
  .amdhsa_user_sgpr_count 2
  .amdhsa_user_sgpr_kernarg_segment_ptr 1
  .amdhsa_system_sgpr_workgroup_id_x 1
.end_amdhsa_kernel
"""

def is_valu(t):
    return t.startswith("v_") and not t.startswith("v_mfma")

def weave(mf, slots):
    out = []
    for i, m in enumerate(mf):
        out.append(m)
        f = slots[i] if (isinstance(slots, list) and i < len(slots)) else (slots.get(i, []) if isinstance(slots, dict) else [])
        out.extend(f)
    return out

_reg = re.compile(r"^(-|\|)?(abs\()?([vas])(?:(\d+)|\[(\d+):(\d+)\])\)?\|?$")
def regs_of(tok):
    tok = tok.strip()
    if tok in ("vcc", "vcc_lo", "vcc_hi"): return {("s", "vcc")}
    if tok in ("exec", "exec_lo", "exec_hi"): return {("s", "exec")}
    if tok == "m0": return {("s", "m0")}
    m = _reg.match(tok)
    if not m: return set()
    f = m.group(3)
    if m.group(4) is not None: return {(f, int(m.group(4)))}
    return {(f, i) for i in range(int(m.group(5)), int(m.group(6)) + 1)}

TRANS = ("v_exp_f32", "v_log_f32", "v_rcp_f32", "v_rsq_f32", "v_sqrt_f32", "v_sin_f32", "v_cos_f32")
class I:
    def __init__(self, text):
        self.t = text
        body = text.split(";")[0].strip()
        p = body.split(None, 1)
        self.op = p[0]
        rest = p[1] if len(p) > 1 else ""
        toks = [x.strip() for x in rest.split(",")] if rest else []
        mods = ""
        if toks:
            last = toks[-1].split(None, 1)
            toks[-1] = last[0]; mods = last[1] if len(last) > 1 else ""
        self.toks, self.mods = toks, mods
        op = self.op
        self.w = set(); self.r = set()
        self.kind = "other"
        self.passes = 0
        R_ = [regs_of(x) for x in toks]
        U = lambda l: set().union(*l) if l else set()
        if op.startswith("v_mfma"):
            self.kind = "mfma"; self.passes = 8 if "32x32x16" in op else 4 if "16x16x32" in op else None
            assert self.passes, op
            self.w = R_[0]; self.ab = R_[1] | R_[2]; self.c = R_[3]; self.r = self.ab | self.c
        elif op.startswith("ds_read") or op.startswith("ds_bpermute") or op.startswith("ds_swizzle") or op.startswith("ds_permute"):
            self.kind = "ds"; self.w = R_[0]; self.r = U(R_[1:])
        elif op.startswith("ds_write") or op.startswith("ds_add") :
            self.kind = "ds"; self.r = U(R_)
        elif op.startswith("buffer_load") or op.startswith("global_load"):
            self.kind = "vmem"
            if " lds" in " " + mods or "_lds_" in op:
                self.r = U(R_) | {("s", "m0")}; self.lds = True
            else:
                self.w = R_[0]; self.r = U(R_[1:])
        elif op.startswith("buffer_store") or op.startswith("global_store"):
            self.kind = "vmem"; self.r = U(R_)
            self.data = R_[0] if op.startswith("buffer") else R_[1]
            self.wide = op.endswith("x4") or op.endswith("x3")
        elif op.startswith("buffer_atomic") or op.startswith("global_atomic"):
            self.kind = "vmem"; self.r = U(R_)
            if "sc0" in mods: self.w = R_[0]
        elif op.startswith("buffer_inv") or op.startswith("buffer_wbl2"):
            self.kind = "vmem"
        elif op.startswith("v_"):
            self.kind = "valu"
            if op.startswith("v_cmp"):
                self.w = R_[0]; self.r = U(R_[1:])
                if op.startswith("v_cmpx"): self.w = self.w | {("s", "exec")}
            elif op.startswith("v_permlane") and "swap" in op:
                self.w = R_[0] | R_[1]; self.r = R_[0] | R_[1]
            elif re.match(r"v_(add|sub|subrev)_co_u32", op):
                self.w = R_[0] | R_[1]; self.r = U(R_[2:])
            elif re.match(r"v_(addc|subb)_co_u32", op):
                self.w = R_[0] | R_[1]; self.r = U(R_[2:])
            elif op == "v_nop": pass
            elif op.startswith("v_swap"):
                self.w = R_[0] | R_[1]; self.r = R_[0] | R_[1]
            else:
                self.w = R_[0]; self.r = U(R_[1:])
                if op.startswith("v_fmac") or op.startswith("v_writelane") or op.startswith("v_dot2c") or "dpp" in op or "row_" in mods or "quad_perm" in mods: self.r = self.r | R_[0]
            self.dpp = ("row_" in mods or "quad_perm" in mods or "wave_" in mods)
        elif op.startswith("s_load") or op in ("s_memtime", "s_memrealtime") or op.startswith("s_buffer_load"):
            self.kind = "smem"; self.w = R_[0]; self.r = U(R_[1:])
        elif op == "s_waitcnt": self.kind = "wait"
        elif op == "s_nop": self.kind = "nop"
        elif op.startswith("s_cbranch") or op == "s_branch": self.kind = "branch"
        elif op in ("s_endpgm",): self.kind = "end"
        elif op in ("s_barrier", "s_sleep", "s_setprio"): self.kind = "misc"
        elif op.startswith("s_cmp") or op.startswith("s_bitcmp"):
            self.kind = "salu"; self.r = U(R_)
        elif op.startswith("s_"):
            self.kind = "salu"; self.w = R_[0] if R_ else set(); self.r = U(R_[1:])
            if "saveexec" in op: self.w = self.w | {("s", "exec")}
            if op in ("s_setpc_b64",): self.w = set(); self.r = U(R_); self.kind = "setpc"
            if op in ("s_swappc_b64",): self.kind = "setpc"
        else:
            raise ValueError("unknown op " + text)
    def states(self):
        if self.kind == "nop": return int(self.toks[0], 0) + 1
        return 1

def need(p, c):
    n = 0
    vg = lambda S: {x for x in S if x[0] in "va"}
    sg = lambda S: {x for x in S if x[0] == "s"}
    if p.kind == "valu":
        if c.kind == "mfma" and vg(p.w) & c.r: n = max(n, 2)
        if c.kind == "mfma" and ("s", "exec") in p.w: n = max(n, 4)
        if c.kind == "valu":
            if p.op.split("_e")[0] in TRANS and (p.w & c.r) and c.op.split("_e")[0] not in TRANS: n = max(n, 1)
            if sg(p.w) & c.r:
                n = max(n, 4 if c.op.startswith(("v_readlane", "v_writelane")) else 2)
            if c.op.startswith("v_cndmask") and len(c.toks) == 3 and ("s", "vcc") in p.w: n = max(n, 2)
            if c.op.startswith(("v_readlane", "v_readfirstlane")) and vg(p.w) & c.r: n = max(n, 1)
            if c.op.startswith("v_permlane") and vg(p.w) & c.r: n = max(n, 2)
            if getattr(c, "dpp", False) and vg(p.w) & c.r: n = max(n, 2)
            if getattr(c, "dpp", False) and ("s", "exec") in p.w: n = max(n, 5)
            if ("s", "exec") in p.w and c.op.startswith(("v_readlane", "v_readfirstlane", "v_writelane", "v_permlane")): n = max(n, 4)
            if ("op_sel" in p.mods or "dst_sel" in p.mods) and (p.w & (c.r | c.w)): n = max(n, 1)
        if c.kind == "vmem" and sg(p.w) & c.r: n = max(n, 5)
    if p.kind == "salu" and ("s", "m0") in p.w and c.kind == "vmem" and ("s", "m0") in c.r: n = max(n, 1)
    if p.kind == "vmem" and getattr(p, "wide", False) and c.kind in ("valu", "mfma", "ds", "vmem") and p.data & c.w:
        n = max(n, 2 if c.kind == "valu" else 1)
    if p.kind == "mfma":
        far = {4: 8, 8: 12}[p.passes]
        if c.kind == "mfma":
            if p.w & c.ab: n = max(n, far)
            if p.w & c.c and not (p.w == c.c and p.passes == c.passes): n = max(n, {4: 6, 8: 10}[p.passes])
            if p.w & c.w and not (p.w == c.w and p.passes == c.passes) : n = max(n, {4: 6, 8: 10}[p.passes])
        elif c.kind in ("valu", "ds", "vmem"):
            if p.w & (c.r | c.w): n = max(n, far)
            if c.kind == "valu" and p.c & c.w: n = max(n, {4: 3, 8: 7}[p.passes])
    return n

def check(k, verbose=True):
    ins = []; labels = {}
    for l in k.L:
        if l.endswith(":"): labels[l[:-1]] = len(ins)
        elif l.startswith(".") or l.startswith(";"): continue
        else: ins.append(I(l))
    n = len(ins)
    succ = [[] for _ in range(n)]
    for i, x in enumerate(ins):
        if x.kind == "end": continue
        if x.kind == "setpc":
            for t in re.findall(r"->(\S+)", x.t): succ[i].append(labels[t])
            continue
        if x.kind == "branch":
            succ[i].append(labels[x.toks[0]])
            if x.op == "s_branch": continue
        if i + 1 < n: succ[i].append(i + 1)
    errs = []
    for i, p in enumerate(ins):
        if p.kind not in ("valu", "mfma", "salu", "vmem"): continue
        if p.kind == "salu" and ("s", "m0") not in p.w: continue
        if p.kind == "vmem" and not getattr(p, "wide", False): continue
        lim = 12 if p.kind == "mfma" else 5
        st = [(j, 0) for j in succ[i]]; seen = set()
        while st:
            j, d = st.pop()
            if d >= lim or (j, d) in seen or j >= n: continue
            seen.add((j, d))
            c = ins[j]
            q = need(p, c)
            if q > d: errs.append(f"HAZARD need {q} have {d}: [{i}] {p.t}  ->  [{j}] {c.t}")
            for t in succ[j]: st.append((t, d + c.states()))
    labset = set(labels.values())
    start = (0, (), (), -1)
    st = [start]; seen = {start}; werr = set(); steps = 0
    while st:
        i, lg, vm, ra = st.pop()
        while True:
            steps += 1
            if steps > 6000000: errs.append("waitcnt walk too long"); st = []; break
            x = ins[i]
            touch = x.r | x.w
            if touch:
                for (src, w) in lg + vm:
                    if w & touch and (src, i) not in werr:
                        y = ins[src]
                        if not (w & x.r) and x.kind == y.kind and x.kind in ("ds", "vmem"): continue
                        werr.add((src, i)); errs.append(f"WAITCNT: [{src}] {y.t}  ->  [{i}] {x.t}")
            if x.kind == "wait":
                m = re.search(r"vmcnt\((\d+)\)", x.t)
                if m:
                    c = int(m.group(1)); vm = vm[len(vm) - c:] if c < len(vm) and c > 0 else (() if c == 0 else vm)
                m = re.search(r"lgkmcnt\((\d+)\)", x.t)
                if m:
                    c = int(m.group(1))
                    if c == 0: lg = ()
                    elif any(ins[q].kind == "smem" for q, _ in lg): pass
                    elif c < len(lg): lg = lg[len(lg) - c:]
            elif x.kind in ("ds", "smem"):
                lg = (lg + ((i, frozenset(x.w)),))
                if len(lg) > 40: lg = lg[-40:]
            elif x.kind == "vmem":
                vm = (vm + ((i, frozenset(x.w)),))
                if len(vm) > 70: vm = vm[-70:]
            while lg and not lg[0][1]: lg = lg[1:]
            while vm and not vm[0][1]: vm = vm[1:]
            sc = succ[i]
            if x.op == "s_swappc_b64": ra = i + 1
            elif x.op == "s_setpc_b64": sc = [ra]; ra = -1
            if len(sc) == 1 and sc[0] == i + 1 and (i + 1) not in labset:
                i += 1; continue
            for t in sc:
                z = (t, lg, vm, ra)
                if z not in seen: seen.add(z); st.append(z)
            break
    if verbose:
        for e in errs[:30]: print(e)
        print(f"{k.name}: {n} instrs, {len(errs)} problems")
    return errs

def write_file(path, header_comment, launches, kerns, tail=""):
    o = [header_comment.rstrip("\n")]
    for (name, grid, block, lds) in launches:
        o.append(f"; @launch kernel={name} grid=({grid},1,1) block=({block},1,1) lds={lds}")
    o.append('.amdgcn_target "amdgcn-amd-amdhsa--gfx950"\n.text')
    for k in kerns: o.append(k.text())
    if tail: o.append(tail)
    o.append('.section .rodata,"a"')
    for k in kerns: o.append(".p2align 6\n" + k.desc())
    open(path, "w").write("\n".join(o))
```

```python
from asmlib import *
WS_XN   = 0x0000000
WS_KV   = 0x0400000
WS_CTX  = 0x2400000
WS_H    = 0x3400000
WS_Z1   = 0x3800000
WS_Z2   = 0x3C00000
WS_Y    = 0x4000000
WS_FLAG = 0x4400000
WS_STAMP= 0xF000000
WS_SIZE = 0x10000000
ARG = dict(x=0, ckv=8, wq=16, wuk=24, wuv=32, wo=40, win=56, wsp=64, bsp=72, wout=80, out=88, dbg=96, ws=104)
SZ = dict(x=2048*512*2, ckv=2048*512*2, wq=512*4096*2, wuk=512*4096*2, wuv=512*4096*2, wo=4096*512*2,
          win=512*1792*2, wsp=2048*2048*2, bsp=2048*2, wout=896*512*2, out=2048*512*2, dbg=256, ws=WS_SIZE)
M16 = "v_mfma_f32_16x16x32_bf16"
M32 = "v_mfma_f32_32x32x16_bf16"

def load_srds(k, srds):
    for n, r in srds.items():
        k(f"s_load_dwordx2 {r[0:2]}, s[0:1], {ARG[n]}")
    for n, r in srds.items():
        k(f"s_mov_b32 {r[2]}, {SZ[n]}", f"s_mov_b32 {r[3]}, 0x20000")
    k("s_waitcnt lgkmcnt(0)")

def f2u(x):
    import struct
    return "0x%08x" % struct.unpack("<I", struct.pack("<f", x))[0]

class Slots:
    def __init__(self, n): self.n = n; self.s = [[] for _ in range(n)]
    def put(self, i, *ins):
        for x in ins:
            if isinstance(x, (list, tuple)): self.put(i, *x)
            else: self.s[i].append(x)
    def spread(self, ins, lo, hi):
        m = len(ins)
        for q, x in enumerate(ins):
            self.put(lo + (q * (hi - lo)) // m, x)
    def weave(self, mf, sort=True):
        assert len(mf) == self.n
        out = []
        for i, m in enumerate(mf):
            out.append(m)
            f = self.s[i]
            if sort: f = [x for x in f if not is_valu(x)] + [x for x in f if is_valu(x)]
            out.extend(f)
        return out

class Diag:
    def __init__(self, k, kidx, on=True): self.k, self.kidx, self.on, self.n, self.names = k, kidx, on, 0, []
    def stamp(self, name="", idx=None):
        if not self.on: return []
        if idx is None:
            idx = self.n; self.n += 1; self.names.append(name or str(idx)); assert self.n <= 64
        return ["s_memrealtime s[96:97]", "s_memtime s[98:99]", "s_waitcnt lgkmcnt(0)",
                f"v_writelane_b32 v254, s96, {idx}", f"v_writelane_b32 v255, s98, {idx}"]
    def flush(self):
        if not self.on: return
        k = self.k
        k(self.stamp("end"))
        k("s_load_dwordx2 s[76:77], s[0:1], 104", "s_mov_b32 s78, 0x10000000", "s_mov_b32 s79, 0x20000", "s_waitcnt lgkmcnt(0)")
        k(f"s_lshl_b32 s80, s2, 9", f"s_add_u32 s80, s80, {WS_STAMP + self.kidx*131072}")
        lab = k.lab("dg")
        k("v_cmp_gt_u32 vcc, 64, v0", "s_and_saveexec_b64 s[82:83], vcc", f"s_cbranch_execz {lab}")
        k("v_lshlrev_b32 v1, 3, v0", "buffer_store_dwordx2 v[254:255], v1, s[76:79], s80 offen")
        k.label(lab)

class VmQ:
    def __init__(self): self.q = []
    def issue(self, tag, n=1): self.q += [tag] * n
    def need(self, *tags):
        last = -1
        for i, t in enumerate(self.q):
            if t in tags: last = i
        n = len(self.q) - 1 - last
        self.q = self.q[last+1:]
        assert n <= 63
        return n

def cost(x):
    op = x.split()[0]
    if op.endswith(":"): return 0
    if op in TRANS: return 8
    if op == "s_nop": return 4 * (int(x.split()[1]) + 1)
    return 4

class Sched:
    def __init__(self, mf, budget=24):
        self.mf = mf; self.n = len(mf); self.b = budget
        self.pre = [[] for _ in mf]
        self.val = [[] for _ in mf]
        self.post = [[] for _ in mf]
        self.tail = []
    def used(self, i): return sum(cost(x) for x in self.pre[i] + self.val[i] + self.post[i])
    def fix(self, i, *ins, where="pre"):
        for x in ins:
            if isinstance(x, (list, tuple)): self.fix(i, *x, where=where)
            else: getattr(self, where)[i].append(x)
    def scatter(self, items, lo, hi, where="pre", mingap=1):
        m = len(items); prev = lo - mingap
        for q, x in enumerate(items):
            i = max(lo + (q * (hi - lo)) // m, prev + mingap)
            i = min(i, self.n - 1)
            self.fix(i, x, where=where); prev = i
    def flow(self, items, lo=0, hi=None):
        hi = self.n if hi is None else hi
        tot = sum(cost(x) for x, _ in items)
        free = [max(0, self.b - self.used(i)) for i in range(lo, hi)]
        F = sum(free)
        if tot <= F: cap = [f * tot / F for f in free]
        else: cap = [f + (tot - F) / (hi - lo) for f in free]
        q = 0; credit = 0.0
        for i in range(lo, hi):
            credit += cap[i - lo]
            room = self.b - self.used(i)
            while q < len(items):
                x, e = items[q]; c = cost(x)
                if e > i: break
                if credit < c * 0.5: break
                if tot <= F and c > room and credit < c + 8: break
                self.val[i].append(x); credit -= c; room -= c; q += 1
        while q < len(items):
            self.val[hi - 1].append(items[q][0]); q += 1
    def out(self):
        o = []
        for i, m in enumerate(self.mf):
            o.append(m); o += self.pre[i] + self.val[i] + self.post[i]
        return o
    def est(self, per=32):
        return sum(max(per, 8 + self.used(i)) for i in range(self.n))
WS_STH = WS_FLAG + 0x10000
WS_STZ = WS_FLAG + 0x40000
WS_WO2   = 0x5000000
WS_WIN2  = 0x5400000
WS_WOUT2 = 0x5600000
WS_WSP2  = 0x5800000
```

```python
from common import *
from p4 import gelu_stream, finish_stats, C0, C1
from mega import nopm0, F_CTX, F_H, F_Z, F_Y, SPIN, FINE
TOP = 131072

def reduce4(M, V, A, ntile, slot):
    k, lane, wv, l16, (t0, t1, t2) = M.k, M.lane, M.wv, M.l16, M.t
    wa = [V(), V(), V()]; rT, rR = V(), V()
    setup = []
    for a_ in range(1, 4):
        reg, off = slot(a_)
        setup += [f"v_add_u32 {t0}, {a_}, {wv}", f"v_and_b32 {t0}, 3, {t0}", f"v_lshl_add_u32 {wa[a_-1]}, {t0}, {13 if reg == 'T' else 15}, {l16}"]
        if reg == 'T': setup.append(f"v_add_u32 {wa[a_-1]}, {TOP}, {wa[a_-1]}")
    setup += [f"v_lshl_add_u32 {rT}, {wv}, 13, {l16}", f"v_add_u32 {rT}, {TOP}, {rT}", f"v_lshl_add_u32 {rR}, {wv}, 15, {l16}"]
    def wr(a_, f): return f"ds_write_b128 {wa[a_-1]}, {A(a_, f)} offset:{slot(a_)[1] + f*1024}"
    def rd(a_, dst):
        reg, off = slot(a_)
        return [f"ds_read_b128 {dst.sub(4*f, 4)}, {rT if reg == 'T' else rR} offset:{off + f*1024}" for f in range(ntile)]
    return setup, wr, rd

def last_step(k, mf_of, ntile, wr):
    order = [(a_, f) for a_ in (1, 2, 3, 0) for f in range(ntile)]
    mf = [mf_of(a_, f) for a_, f in order]
    sc = Sched(mf, 8); LAG = 8; rest = []
    for z, (a_, f) in enumerate(order):
        if a_ == 0: continue
        if z + LAG < len(mf): sc.fix(z + LAG, wr(a_, f))
        else: rest.append(wr(a_, f))
    k(sc.out())
    if rest: k("s_nop 3", rest)
    k("s_waitcnt lgkmcnt(0)", "s_barrier")

def tail(M):
    k, diag, srd = M.k, M.diag, M.srd
    lane, wv, l16, (t0, t1, t2) = M.lane, M.wv, M.l16, M.t
    sw = M.sw; ws = srd["ws"]; hres = M.hres
    S = M.S()
    srt, sct, sM, sF, st0, st1 = [S() for _ in range(6)]
    srb, scb, sW4, srt5, scb5, sZ5, sW5, sW6, sX = [S() for _ in range(9)]
    sbase = S.p
    vP, vPd, vR = R('v', 239), R('v', 238), R('v', 237)
    q = VmQ()
    k(f"s_lshl_b32 {sF}, {M.sj}, 7", f"s_add_u32 {sF}, {sF}, {WS_FLAG + F_CTX*128}",
      f"s_and_b32 {st0}, s2, 7", f"s_lshl_b32 {st0}, {st0}, 2", f"s_bfe_u32 {st1}, s2, 0x20003", f"s_add_u32 {srt}, {st0}, {st1}",
      f"s_lshr_b32 {sct}, s2, 5", f"s_lshl_b32 {sM}, {sw}, 15",
      f"v_and_b32 {t0}, 7, {lane}", f"v_lshlrev_b32 {vP}, 7, {t0}")
    V = Alloc('v', 112, 237)
    vX = [V() for _ in range(4)]; vH = V(); rs = V(8, 2); ib = V(48, 2); rf = V(16)
    for a_ in range(4):
        k(f"v_add_u32 {t0}, {a_}, {wv}", f"v_and_b32 {t0}, 3, {t0}", f"v_lshl_add_u32 {vX[a_]}, {t0}, 17, {l16}")
    k(f"s_lshl_b32 {sX}, {srt}, 19", f"s_lshl_b32 {st0}, {sw}, 15", f"s_add_u32 {sX}, {sX}, {st0}", f"s_add_u32 {sX}, {sX}, {WS_CTX}")
    k(M.rowmap(t2, t0), f"v_lshrrev_b32 {t1}, 4, {lane}", f"v_lshlrev_b32 {t1}, 3, {t1}", f"v_lshl_add_u32 {vR}, {t2}, 10, {t1}",
      f"v_lshl_add_u32 {vH}, {wv}, 14, {l16}")
    k("s_waitcnt vmcnt(0)", "s_barrier")
    M.arrive(ws, sF)
    k(diag.stamp("ctxdone"))
    for ks in range(9, 15): k(M.w3ld(ks))
    k(f"s_lshl_b32 {st0}, {srt}, 16", f"s_lshl_b32 {st1}, {sct}, 7", f"s_add_u32 {st0}, {st0}, {st1}",
      [f"buffer_load_dwordx2 {rs.sub(2*mt, 2)}, {vR}, {srd['x']}, {st0} offen offset:{32*mt}" for mt in range(4)])
    vP0 = V()
    k(f"s_lshr_b32 {st0}, {srt}, 1", f"s_sub_u32 {st1}, 15, {st0}", f"s_min_u32 {st0}, {st0}, {st1}", f"v_mov_b32 {vP0}, 0",
      f"s_lshl_b32 {sF}, {st0}, 7", f"s_add_u32 {sF}, {sF}, {WS_FLAG + F_CTX*128}", M.poll0_issue(vPd, vP0, ws, sF))
    k(f"s_and_b32 {st0}, s2, 7", f"s_lshl_b32 {st0}, {st0}, 1", f"s_bfe_u32 {st1}, s2, 0x10003", f"s_add_u32 {srb}, {st0}, {st1}",
      f"s_lshr_b32 {scb}, s2, 4", f"s_lshl_b32 {sW4}, {scb}, 16", f"s_lshl_b32 {st0}, {sw}, 12", f"s_add_u32 {sW4}, {sW4}, {st0}", f"s_add_u32 {sW4}, {sW4}, {WS_WIN2}",
      f"s_cmp_ge_u32 s2, 224", f"s_cselect_b32 {sW4}, 0x10000000, {sW4}",
      f"s_bfe_u32 {st0}, s2, 0x20001", f"s_lshl_b32 {st0}, {st0}, 3", f"s_bfe_u32 {st1}, s2, 0x30003", f"s_add_u32 {srt5}, {st0}, {st1}",
      f"s_and_b32 {st0}, s2, 1", f"s_lshl_b32 {st0}, {st0}, 2", f"s_lshr_b32 {st1}, s2, 6", f"s_add_u32 {scb5}, {st0}, {st1}",
      f"s_lshl_b32 {sW5}, {srt5}, 18", f"s_lshl_b32 {st0}, {sw}, 16", f"s_add_u32 {sW5}, {sW5}, {st0}", f"s_add_u32 {sW5}, {sW5}, {WS_WSP2}",
      f"s_mul_i32 {sZ5}, {scb5}, {7*65536}", f"s_lshl_b32 {st0}, {sw}, 14", f"s_add_u32 {sZ5}, {sZ5}, {st0}", f"s_add_u32 {sZ5}, {sZ5}, {WS_Z2}",
      f"s_mul_i32 {sW6}, {sct}, 114688", f"s_mul_i32 {st0}, {sw}, 28672", f"s_add_u32 {sW6}, {sW6}, {st0}", f"s_add_u32 {sW6}, {sW6}, {WS_WOUT2}")
    acc = R('v', 0, 64); Xr = R('a', 64, 64)
    def A(a_, mt): return acc.sub(16*a_ + 4*mt, 4)
    slot46 = lambda a_: ('T', (a_ - 1)*4096) if a_ < 3 else ('R', 7*4096)
    rsetup, rwr, rrd = reduce4(M, V, A, 4, slot46)
    k(rsetup)
    def xld(i):
        L = [f"buffer_load_dwordx4 {Xr.sub(16*(i % 4) + 4*a_, 4)}, {vX[a_]}, {ws}, {sX} offen offset:{1024*(i % 4)} sc1" for a_ in range(4)]
        if i % 4 == 3: L.append(f"s_add_u32 {sX}, {sX}, 4096")
        q.issue(("X", i), 4); return L
    def w4ld(z):
        part, n = z >> 2, z & 3
        L = [f"s_add_u32 m0, {sM}, {z*4096}", f"s_add_u32 {st1}, {sW4}, {n*16384 + (14*65536 if part == 0 else 0)}"]
        L += [f"buffer_load_dwordx4 {l16}, {ws}, {st1} offen offset:{1024*y} sc1 lds" for y in range(4)]
        q.issue(("W4", z), 4); return L
    M.poll0_wait(vPd, vP0, ws, sF, 32)
    k(f"s_mov_b32 {sF}, {WS_FLAG + F_CTX*128}")
    k(diag.stamp("ctxwait"))
    for i in range(3): k(xld(i))
    wat = {1 + (m*27)//17: 15 + m for m in range(17)}
    for i in range(32):
        mf_of = lambda a_, mt: f"{M16} {A(a_, mt)}, {M.w3slot(i).sub(4*mt, 4)}, {Xr.sub(16*(i % 4) + 4*a_, 4)}, {0 if i == 0 else A(a_, mt)}"
        k(f"s_waitcnt vmcnt({q.need(('X', i), ('W', i))})")
        if i == 29: M.poll_check(vPd, vP, ws, sF, 32)
        if i == 31:
            k(w4ld(4), w4ld(5), w4ld(6))
            last_step(k, mf_of, 4, rwr); break
        sc = Sched([mf_of(a_, mt) for mt in range(4) for a_ in range(4)], 8)
        L = []
        if i == 22: L.append(M.poll_issue(vPd, vP, ws, sF)); q.issue("P")
        if i + 3 < 32: L += xld(i + 3)
        else: L += w4ld(2*(i - 29)) + w4ld(2*(i - 29) + 1)
        if i in wat: L += M.w3ld(wat[i]); q.issue(("W", wat[i]), 4)
        for z, x in enumerate(L): sc.fix(z, x)
        k(sc.out())
    k(diag.stamp("p3"))
    def unpack(src): return [x for z in range(8) for x in (f"v_lshlrev_b32 {rf[2*z]}, 16, {src[z]}", f"v_and_b32 {rf[2*z+1]}, 0xffff0000, {src[z]}")]
    def finish64(res):
        for a_ in range(1, 4): k(rrd(a_, ib.sub(16*(a_ - 1), 16)))
        k(unpack(res))
        for z in range(16): k(f"v_add_f32 {acc[z]}, {acc[z]}, {rf[z]}")
        for a_ in range(3):
            k(f"s_waitcnt lgkmcnt({8 - 4*a_})")
            for z in range(16): k(f"v_add_f32 {acc[z]}, {acc[z]}, {ib[16*a_ + z]}")
    finish64(rs)
    for z in range(8): k(f"v_cvt_pk_bf16_f32 {hres[z]}, {acc[2*z]}, {acc[2*z+1]}")
    k(f"s_lshl_b32 {st1}, {sct}, 11", f"s_lshl_b32 {st0}, {srt}, 16", f"s_add_u32 {st1}, {st1}, {st0}", f"s_add_u32 {st1}, {st1}, {WS_H}")
    for P in range(2): k(f"buffer_store_dwordx4 {hres.sub(4*P, 4)}, {vH}, {ws}, {st1} offen offset:{1024*P} sc1")
    sm = V(2, 2); u_ = V(2, 2)
    k(unpack(hres))
    k(f"v_add_f32 {sm[0]}, {rf[0]}, {rf[1]}", f"v_mul_f32 {sm[1]}, {rf[0]}, {rf[0]}", f"v_fmac_f32 {sm[1]}, {rf[1]}, {rf[1]}")
    for z in range(2, 16): k(f"v_add_f32 {sm[0]}, {sm[0]}, {rf[z]}", f"v_fmac_f32 {sm[1]}, {rf[z]}, {rf[z]}")
    for sw_ in ("v_permlane16_swap_b32", "v_permlane32_swap_b32"):
        k(f"v_mov_b32 {u_[0]}, {sm[0]}", f"v_mov_b32 {u_[1]}, {sm[1]}", "s_nop 0", f"{sw_} {u_[0]}, {sm[0]}", f"{sw_} {u_[1]}, {sm[1]}",
          f"v_add_f32 {sm[0]}, {sm[0]}, {u_[0]}", f"v_add_f32 {sm[1]}, {sm[1]}, {u_[1]}")
    k(f"v_lshlrev_b32 {t0}, 3, {lane}", f"v_lshl_add_u32 {t0}, {wv}, 10, {t0}",
      f"s_lshl_b32 {st0}, {srt}, 12", f"s_lshl_b32 {st1}, {sct}, 7", f"s_add_u32 {st0}, {st0}, {st1}", f"s_add_u32 {st0}, {st0}, {WS_STH}",
      "s_mov_b64 exec, 0xffff", f"buffer_store_dwordx2 {sm}, {t0}, {ws}, {st0} offen sc1", "s_mov_b64 exec, -1")
    k(w4ld(7))
    k(f"s_lshr_b32 {sF}, {srt}, 1", f"s_lshl_b32 {sF}, {sF}, 7", f"s_add_u32 {sF}, {sF}, {WS_FLAG + F_H*128}", f"v_mov_b32 {vP}, 0")
    k("s_waitcnt vmcnt(0)", "s_barrier"); q.q = []
    M.arrive(ws, sF)
    k(diag.stamp("hdone"))
    def w5r(i): return R('a', (128 + 16*i) % 256, 16)
    def w5ld(i):
        q.issue(("W5", i), 4)
        return [f"buffer_load_dwordx4 {w5r(i).sub(4*a_, 4)}, {l16}, {ws}, {sW5} offen offset:{1024*a_} sc1" for a_ in range(4)] + [f"s_add_u32 {sW5}, {sW5}, 4096"]
    Lidle, Lp5 = k.lab("idle4"), k.lab("p5")
    k("s_cmp_ge_u32 s2, 224", f"s_cbranch_scc1 {Lidle}")
    V = Alloc('v', 0, 237); S4 = Alloc('s', sbase, 96)
    sH, sc0, sZ, sblk = [S4() for _ in range(4)]
    k(f"s_lshl_b32 {sF}, {srb}, 7", f"s_add_u32 {sF}, {sF}, {WS_FLAG + F_H*128}")
    rW4 = V(); vHb = V(); ones = V(4, 2); vc1 = V()
    NW = 3
    Wf4 = V(16*NW, 2); acc4 = [V(48, 2), V(48, 2)]
    def A4(part, u, mt): return acc4[part].sub(16*u + 4*mt, 4)
    def reads4(part, i, c):
        w_, n = i & 3, i >> 2
        return [f"ds_read_b128 {Wf4.sub(16*(c % NW) + 4*mt, 4)}, {rW4 if w_ >> 1 else l16} offset:{(w_ & 1)*32768 + (4*part + n)*4096 + mt*1024}" for mt in range(4)]
    k(f"v_add_u32 {rW4}, 0x10000, {l16}")
    seq = [(p, i) for p in range(2) for i in range(16)] * 2
    k(reads4(*seq[0], 0), reads4(*seq[1], 1))
    for z in range(4): k(f"v_mov_b32 {ones[z]}, 0x3f803f80")
    Hf = R('a', 0, 128)
    sp = V(8, 2); vS, vSw, vS2, vS1, vPs, vZs = V(), V(), V(), V(), V(), V()
    st2 = V(16, 2); st1r = V(4, 2); sm = V(2, 2); u_ = V(2, 2); tm = V(8); pl = V(14, 2)
    setup = [f"v_add_u32 {vHb}, 16384, {l16}", f"v_mov_b32 {vc1}, {f2u(-C1)}",
      f"v_and_b32 {t0}, 15, {lane}", f"v_lshlrev_b32 {t0}, 3, {t0}", f"v_bfe_u32 {t1}, {lane}, 4, 1", f"v_lshl_add_u32 {vS}, {t1}, 10, {t0}",
      f"v_lshrrev_b32 {t1}, 5, {lane}", f"v_lshl_add_u32 {vS}, {t1}, 9, {vS}",
      f"v_lshlrev_b32 {t2}, 13, {wv}", f"v_add_u32 {t2}, {TOP}, {t2}", f"v_add_u32 {vS1}, {t0}, {t2}",
      f"v_and_b32 {t0}, 31, {lane}", f"v_lshl_add_u32 {vSw}, {t0}, 3, {t2}",
      f"v_lshrrev_b32 {t0}, 4, {lane}", f"v_lshl_add_u32 {vS2}, {t0}, 5, {t2}",
      f"v_and_b32 {t0}, 31, {lane}", f"v_lshlrev_b32 {t0}, 3, {t0}", f"v_lshl_add_u32 {t0}, {wv}, 8, {t0}",
      f"v_lshrrev_b32 {t1}, 5, {lane}", f"v_mul_u32_u24 {t1}, 7168, {t1}", f"v_add_u32 {vPs}, {t0}, {t1}",
      f"v_lshrrev_b32 {t0}, 4, {lane}", f"v_lshlrev_b32 {t0}, 5, {t0}", f"v_lshl_add_u32 {t0}, {wv}, 8, {t0}",
      f"v_bfe_u32 {t1}, {lane}, 3, 1", f"v_lshl_add_u32 {t0}, {t1}, 7, {t0}", f"v_bfe_u32 {t1}, {lane}, 2, 1", f"v_lshl_add_u32 {vZs}, {t1}, 4, {t0}"]
    k(f"s_lshl_b32 {sblk}, {srb}, 2", f"s_add_u32 {sblk}, {sblk}, {sw}", f"s_lshl_b32 {sH}, {sblk}, 15", f"s_add_u32 {sH}, {sH}, {WS_H}",
      f"s_mov_b32 {sc0}, {f2u(-C0)}", f"s_lshl_b32 {st0}, {sblk}, 11", f"s_add_u32 {st0}, {st0}, {WS_STH}",
      f"s_mul_i32 {sZ}, {srb}, {14*1024}", f"s_add_u32 {sZ}, {sZ}, {WS_STZ}")
    def half_reduce():
        return [f"v_mov_b32 {u_[0]}, {sm[0]}", f"v_mov_b32 {u_[1]}, {sm[1]}", "s_nop 0", f"v_permlane32_swap_b32 {u_[0]}, {sm[0]}", f"v_permlane32_swap_b32 {u_[1]}, {sm[1]}",
                f"v_add_f32 {sm[0]}, {sm[0]}, {u_[0]}", f"v_add_f32 {sm[1]}, {sm[1]}, {u_[1]}"]
    rd_st2 = [f"ds_read_b128 {st2.sub(4*z, 4)}, {vS2} offset:{128*(z >> 1) + 16*(z & 1)}" for z in range(4)]
    def step4(c, us, wait=""):
        part, i = seq[c]; mf = []
        for mt in range(4):
            for u in us:
                d = A4(part, u, mt); x = ones if u == 2 else Hf.sub(8*i + 4*u, 4); w_ = Wf4.sub(16*(c % NW) + 4*mt, 4); cc = 0 if i == 0 else d
                mf.append(f"{M16} {d}, {x}, {w_}, {cc}" if part == 0 else f"{M16} {d}, {w_}, {x}, {cc}")
        sc = Sched(mf, 8)
        k(f"s_waitcnt {wait}lgkmcnt({4 if c + 1 < 64 else 0})")
        if c + 2 < 64:
            for z, x in enumerate(reads4(*seq[c + 2], c + 2)): sc.fix(z*len(us), x)
        return sc
    def hld(i):
        L = [f"buffer_load_dwordx4 {Hf.sub(8*i + 4*u, 4)}, {vHb if u else l16}, {ws}, {sH} offen offset:{1024*(i % 4)} sc1" for u in range(2)]
        q.issue(("H", i), 2)
        if i % 4 == 3: L.append(f"s_add_u32 {sH}, {sH}, 4096")
        return L
    CP = 20
    for c in range(32):
        sc = step4(c, (2,))
        if c < 7:
            for z, x in enumerate(setup[4*c:4*c + 4]): sc.fix(z, x, where="val")
        if c == 8: sc.fix(0, M.poll0_issue(vPd, vP, ws, sF))
        if c >= CP + 2 and c % 2 == 0:
            for z, x in enumerate(hld(4 + (c - CP - 2)//2)): sc.fix(z, x)
        k(sc.out())
        if c == CP - 1:
            M.poll0_wait(vPd, vP, ws, sF, 16)
            k(diag.stamp("hwait"))
            for i in range(4): k(hld(i))
            k([f"buffer_load_dwordx2 {sp.sub(2*z, 2)}, {vS}, {ws}, {st0} offen offset:{128*z} sc1" for z in range(4)]); q.issue("S", 4)
    hst = [f"v_add_f32 {sm[0]}, {sp[0]}, {sp[2]}", f"v_add_f32 {sm[1]}, {sp[1]}, {sp[3]}", f"v_add_f32 {u_[0]}, {sp[4]}, {sp[6]}", f"v_add_f32 {u_[1]}, {sp[5]}, {sp[7]}",
           f"v_add_f32 {sm[0]}, {sm[0]}, {u_[0]}", f"v_add_f32 {sm[1]}, {sm[1]}, {u_[1]}"] + half_reduce() + finish_stats(sm[0], sm[1], 512) + \
          [f"ds_write_b64 {vSw}, {sm}"] + rd_st2 + [f"ds_read_b64 {st1r.sub(2*u, 2)}, {vS1} offset:{128*u}" for u in range(2)]
    for c in range(32, 48):
        sc = step4(c, (0, 1), f"vmcnt({q.need(('H', c - 32))}) ")
        if c == 38: k(hst)
        if c - 32 + 9 < 16:
            for z, x in enumerate(hld(c - 32 + 9)): sc.fix(2*z + 1, x)
        k(sc.out())
    k(diag.stamp("p4a"))
    fl = ["s_nop 1"]; z2 = []
    for u in range(2):
        for mt in range(4):
            g = []
            for e in range(4):
                r = A4(0, u, mt)[e]; row = 4*u + e
                fl += [f"v_mul_f32 {r}, {r}, {st2[2*row]}", f"v_fmac_f32 {r}, {st2[2*row+1]}, {A4(0, 2, mt)[0]}"]; g.append(r)
            fl += gelu_stream(g, tm, sc0, vc1); z2 += g
    ps = R('v', A4(0, 2, 0).b, 16)
    for u in range(2):
        for e in range(4):
            row = 4*u + e; a0, a1, a2, a3 = [A4(0, u, mt)[e] for mt in range(4)]
            fl += [f"v_add_f32 {ps[2*row]}, {a0}, {a1}", f"v_mul_f32 {ps[2*row+1]}, {a0}, {a0}", f"v_add_f32 {tm[0]}, {a2}, {a3}",
                   f"v_fmac_f32 {ps[2*row+1]}, {a1}, {a1}", f"v_add_f32 {ps[2*row]}, {ps[2*row]}, {tm[0]}",
                   f"v_fmac_f32 {ps[2*row+1]}, {a2}, {a2}", f"v_fmac_f32 {ps[2*row+1]}, {a3}, {a3}"]
    for z in range(8): fl.append(f"v_add_f32_dpp {ps[z]}, {ps[z]}, {ps[z]} row_ror:8 row_mask:0xf bank_mask:0x3")
    for z in range(8): fl.append(f"v_add_f32_dpp {ps[z]}, {ps[8+z]}, {ps[8+z]} row_ror:8 row_mask:0xf bank_mask:0xc")
    for z in range(4): fl.append(f"v_add_f32_dpp {ps[z]}, {ps[z]}, {ps[z]} row_half_mirror row_mask:0xf bank_mask:0x5")
    for z in range(4): fl.append(f"v_add_f32_dpp {ps[z]}, {ps[4+z]}, {ps[4+z]} row_half_mirror row_mask:0xf bank_mask:0xa")
    for qp in ("[1,0,3,2]", "[2,3,0,1]"):
        for z in range(4): fl.append(f"v_add_f32_dpp {ps[z]}, {ps[z]}, {ps[z]} quad_perm:{qp} row_mask:0xf bank_mask:0xf")
    NG = 14; per = (sum(cost(x) for x in fl) + NG - 1) // NG
    for c in range(48, 64):
        sc = step4(c, (0, 1))
        i = c - 48
        if i < 8:
            for z, x in enumerate(w5ld(i)): sc.fix(1 + z + (z > 2), x)
        take = []; acc_c = 0
        while fl and (acc_c < per or i == NG - 1): acc_c += cost(fl[0]); take.append(fl.pop(0))
        if take: sc.flow([(x, 0) for x in take], 2 if i == 0 else 0)
        k(sc.out())
        if i == NG - 1:
            k(f"s_lshl_b32 {st0}, {scb}, 10", f"s_add_u32 {st0}, {st0}, {sZ}", "s_mov_b32 exec_lo, 0x11111111", "s_mov_b32 exec_hi, 0x11111111",
              f"buffer_store_dwordx4 {ps.sub(0, 4)}, {vZs}, {ws}, {st0} offen sc1", "s_mov_b64 exec, -1")
    k(diag.stamp("p4b"))
    for i in range(8, 11): k(w5ld(i))
    k(f"s_mul_i32 {sH}, {sblk}, {2*28672}", f"s_lshl_b32 {st0}, {scb}, 11", f"s_add_u32 {sH}, {sH}, {st0}", f"s_add_u32 {sH}, {sH}, {WS_Z1}",
      f"s_add_u32 {st1}, {sH}, 28672", f"s_add_u32 {st0}, {sZ}, 4096")
    def poll(): return [f"buffer_load_dwordx2 {pl.sub(2*z, 2)}, {vPs}, {ws}, {sZ if z < 4 else st0} offen offset:{1024*(z % 4)} sc1" for z in range(7)]
    o = Wf4
    for u in range(2):
        for P in range(2):
            g = []
            for mt in (2*P, 2*P + 1):
                for e in range(4):
                    r = A4(1, u, mt)[e]
                    k(f"v_mul_f32 {r}, {r}, {st1r[2*u]}", f"v_fmac_f32 {r}, {st1r[2*u+1]}, {A4(1, 2, mt)[e]}"); g.append(r)
            k(gelu_stream(g, tm, sc0, vc1))
            oo = o.sub(8*u + 4*P, 4)
            for z in range(4): k(f"v_cvt_pk_bf16_f32 {oo[z]}, {g[2*z]}, {g[2*z+1]}")
            if (u, P) == (1, 0): k(poll())
            k(f"buffer_store_dwordx4 {oo}, {l16}, {ws}, {st1 if u else sH} offen offset:{1024*P} sc1")
    k(diag.stamp("p4c"))
    lp, ld = k.lab("poll"), k.lab("got")
    k(f"s_mov_b32 {M.sspin}, {SPIN}", "s_waitcnt vmcnt(2)")
    k.label(lp)
    k(f"v_max_u32 {t0}, {pl[0]}, {pl[1]}")
    for z in range(1, 7): k(f"v_max3_u32 {t0}, {t0}, {pl[2*z]}, {pl[2*z+1]}")
    k(f"v_cmp_eq_u32 vcc, -1, {t0}", f"s_cbranch_vccz {ld}", f"s_sub_u32 {M.sspin}, {M.sspin}, 1", f"s_cbranch_scc1 {ld}", "s_sleep 2", poll(), "s_waitcnt vmcnt(0)", f"s_branch {lp}")
    k.label(ld)
    k(diag.stamp("p4d"))
    k(f"v_add_f32 {sm[0]}, {pl[0]}, {pl[2]}", f"v_add_f32 {sm[1]}, {pl[1]}, {pl[3]}")
    for z in range(2, 7): k(f"v_add_f32 {sm[0]}, {sm[0]}, {pl[2*z]}", f"v_add_f32 {sm[1]}, {sm[1]}, {pl[2*z+1]}")
    k(half_reduce(), finish_stats(sm[0], sm[1], 896), f"ds_write_b64 {vSw}, {sm}", rd_st2)
    k(f"s_lshl_b32 {st0}, {scb}, 18", f"s_lshl_b32 {st1}, {sblk}, 10", f"s_add_u32 {st0}, {st0}, {st1}", f"s_add_u32 {st0}, {st0}, {WS_Z2}",
      f"s_lshl_b32 {sF}, {scb}, 7", f"s_add_u32 {sF}, {sF}, {WS_FLAG + F_Z*128}", "s_waitcnt lgkmcnt(0)")
    o = Wf4.sub(16, 16)
    for mt in range(4):
        for u in range(2):
            for e in range(4):
                r = A4(0, u, mt)[e]; row = 4*u + e
                k(f"v_fma_f32 {r}, {r}, {st2[2*row]}, {st2[2*row+1]}")
        oo = o.sub(4*mt, 4)
        for z in range(4):
            r = A4(0, z >> 1, mt)
            k(f"v_cvt_pk_bf16_f32 {oo[z]}, {r[2*(z & 1)]}, {r[2*(z & 1) + 1]}")
        k(f"buffer_store_dwordx4 {oo}, {l16}, {ws}, {st0} offen sc1")
        if mt < 3: k(f"s_add_u32 {st0}, {st0}, 65536")
    k("s_waitcnt vmcnt(0)", "s_barrier")
    M.arrive(ws, sF)
    k(f"s_branch {Lp5}")
    k.label(Lidle)
    for i in range(11): k(w5ld(i))
    if diag.on:
        for z in range(5): k(diag.stamp(idx=diag.n - 5 + z))
    k.label(Lp5)
    k(diag.stamp("zdone"))
    for i in range(11, 16): k(w5ld(i))
    V = Alloc('v', 0, 237); S6 = Alloc('s', sbase, 96)
    sY, sB, sX6 = [S6() for _ in range(3)]
    bb, vB = V(), V()
    k(M.rowmap(t2, t0), f"v_lshlrev_b32 {vB}, 1, {t2}", f"s_lshl_b32 {sB}, {srt5}, 7", f"buffer_load_ushort {bb}, {vB}, {srd['bsp']}, {sB} offen")
    k(f"s_mul_i32 {st0}, {scb5}, 7", f"s_add_u32 {st1}, {st0}, 6", f"s_lshr_b32 {st0}, {st0}, 2", f"s_lshr_b32 {st1}, {st1}, 2",
      f"v_and_b32 {t0}, 3, {lane}", f"v_add_u32 {t0}, {st0}, {t0}", f"v_min_u32 {t0}, {st1}, {t0}", f"v_lshlrev_b32 {vP}, 7, {t0}",
      f"s_mov_b32 {sF}, {WS_FLAG + F_Z*128}", M.poll0_issue(vPd, vP, ws, sF))
    vZ = [l16] + [V() for _ in range(6)]
    for f in range(1, 7): k(f"v_add_u32 {vZ[f]}, {65536*f}, {l16}")
    NZ = 3
    acc5 = V(112, 2); Zr = V(28*NZ, 2)
    def A5(a_, f): return acc5.sub(28*a_ + 4*f, 4)
    def zld(i):
        L = [f"buffer_load_dwordx4 {Zr.sub(28*(i % NZ) + 4*f, 4)}, {vZ[f]}, {ws}, {sZ5} offen offset:{1024*(i % 4)} sc1" for f in range(7)]
        if i % 4 == 3: L.append(f"s_add_u32 {sZ5}, {sZ5}, 4096")
        q.issue(("Z", i), 7); return L
    z1r = V(14, 2); vY = [V(), V()]; l8 = vB
    rsetup5, rwr5, rrd5 = reduce4(M, V, A5, 7, lambda a_: ('R', (a_ - 1)*7168))
    k(rsetup5)
    k(f"s_and_b32 {st1}, {scb5}, 1", f"s_lshl_b32 {st0}, {st1}, 3", f"v_add_u32 {vY[0]}, {st0}, {l16}",
      f"s_mul_i32 {st0}, {st1}, 1016", f"s_add_u32 {st0}, {st0}, 8", f"v_add_u32 {vY[1]}, {st0}, {l16}",
      f"v_lshlrev_b32 {l8}, 3, {lane}",
      f"s_lshl_b32 {st0}, {srt5}, 2", f"s_add_u32 {st0}, {st0}, {sw}", f"s_mul_i32 {st0}, {st0}, 28672",
      f"s_mul_i32 {st1}, {scb5}, 3584", f"s_add_u32 {sY}, {st0}, {st1}", f"s_add_u32 {sY}, {sY}, {WS_Y}",
      f"s_mul_i32 {st1}, {scb5}, 7", f"s_lshr_b32 {st1}, {st1}, 1", f"s_lshl_b32 {st1}, {st1}, 10",
      f"s_add_u32 {st0}, {st0}, {st1}", f"s_add_u32 {st0}, {st0}, {WS_Z1}")
    def w6r(i): return R('a', 128 + 16*i, 16)
    def w6ld(i):
        q.issue(("W6", i), 4)
        return [f"buffer_load_dwordx4 {w6r(i).sub(4*mt, 4)}, {l16}, {ws}, {sW6} offen offset:{1024*mt} sc1" for mt in range(4)] + [f"s_add_u32 {sW6}, {sW6}, 4096"]
    q.q = []
    M.poll0_wait(vPd, vP, ws, sF, 16)
    k(diag.stamp("zwait"))
    for i in range(2): k(zld(i))
    for i in range(16):
        mf_of = lambda a_, f: f"{M16} {A5(a_, f)}, {Zr.sub(28*(i % NZ) + 4*f, 4)}, {w5r(i).sub(4*a_, 4)}, {0 if i == 0 else A5(a_, f)}"
        k(f"s_waitcnt vmcnt({q.need(('Z', i))})")
        if i == 15:
            k(w6ld(2), w6ld(3))
            last_step(k, mf_of, 7, rwr5); break
        sc = Sched([mf_of(a_, f) for f in range(7) for a_ in range(4)], 8)
        if i + 2 < 16: L = zld(i + 2)
        else:
            L = [f"buffer_load_dwordx2 {z1r.sub(2*f, 2)}, {vY[f & 1]}, {ws}, {st0} offen offset:{1024*(f >> 1)} sc1" for f in range(7)]; q.issue("E", 7)
            L += w6ld(0) + w6ld(1)
        for z, x in enumerate(L): sc.fix(z, x)
        k(sc.out())
    k(diag.stamp("p5"))
    for a_ in range(1, 3): k(rrd5(a_, Zr.sub(28*(a_ - 1), 28)))
    k(f"v_lshlrev_b32 {bb}, 16, {bb}")
    for z in range(28): k(f"v_add_f32 {acc5[z]}, {acc5[z]}, {bb}")
    k("s_waitcnt lgkmcnt(7)", rrd5(3, Zr.sub(56, 28)))
    for z in range(28): k(f"v_add_f32 {acc5[z]}, {acc5[z]}, {Zr[z]}")
    k("s_waitcnt lgkmcnt(7)")
    for z in range(28): k(f"v_add_f32 {acc5[z]}, {acc5[z]}, {Zr[28 + z]}")
    k(f"s_waitcnt vmcnt({q.need('E')}) lgkmcnt(0)")
    for z in range(14):
        k(f"v_add_f32 {acc5[2*z]}, {acc5[2*z]}, {Zr[56 + 2*z]}", f"v_add_f32 {acc5[2*z+1]}, {acc5[2*z+1]}, {Zr[57 + 2*z]}",
          f"v_lshlrev_b32 {t0}, 16, {z1r[z]}", f"v_and_b32 {t1}, 0xffff0000, {z1r[z]}",
          f"v_mul_f32 {t0}, {t0}, {acc5[2*z]}", f"v_mul_f32 {t1}, {t1}, {acc5[2*z+1]}", f"v_cvt_pk_bf16_f32 {z1r[z]}, {t0}, {t1}")
        if z % 4 == 3: k(f"buffer_store_dwordx4 {z1r.sub(z - 3, 4)}, {l16}, {ws}, {sY} offen offset:{1024*(z >> 2)} sc1")
    k(f"buffer_store_dwordx2 {z1r.sub(12, 2)}, {l8}, {ws}, {sY} offen offset:3072 sc1")
    k(f"s_lshl_b32 {sF}, {srt5}, 7", f"s_add_u32 {sF}, {sF}, {WS_FLAG + F_Y*128}")
    vX8 = [rs[i] for i in range(4)]
    for a_ in range(4):
        k(f"v_add_u32 {t0}, {a_}, {wv}", f"v_and_b32 {t0}, 3, {t0}", f"v_mul_u32_u24 {t0}, 28672, {t0}", f"v_add_u32 {vX[a_]}, {t0}, {l16}",
          f"v_lshl_add_u32 {vX8[a_]}, {lane}, 3, {t0}")
    k(rsetup, f"v_mov_b32 {vP}, 0",
      f"s_mul_i32 {sX6}, {srt}, {4*28672}", f"s_mul_i32 {st0}, {sw}, 7168", f"s_add_u32 {sX6}, {sX6}, {st0}", f"s_add_u32 {sX6}, {sX6}, {WS_Y}",
      f"s_add_u32 {sY}, {sX6}, 3584",
      f"s_lshl_b32 {st0}, {srt}, 16", f"s_lshl_b32 {st1}, {sct}, 7", f"s_add_u32 {st0}, {st0}, {st1}")
    k("s_waitcnt vmcnt(0)", "s_barrier"); q.q = []
    M.arrive(ws, sF)
    k(diag.stamp("ydone"))
    for i in range(4, 7): k(w6ld(i))
    k(f"s_lshl_b32 {sF}, {srt}, 7", f"s_add_u32 {sF}, {sF}, {WS_FLAG + F_Y*128}", M.poll0_issue(vPd, vP, ws, sF))
    q.q = []
    M.poll0_wait(vPd, vP, ws, sF, 8)
    k(diag.stamp("ywait"))
    Y = R('a', 0, 112)
    def yld(i):
        if i < 6:
            q.issue(("X", i), 4)
            return [f"buffer_load_dwordx4 {Y.sub(16*i + 4*a_, 4)}, {vX[a_]}, {ws}, {sY if i >= 3 else sX6} offen offset:{1024*(i % 3)} sc1" for a_ in range(4)]
        q.issue(("X", 6), 8)
        return [f"buffer_load_dwordx2 {Y.sub(96 + 4*a_ + 2*h, 2)}, {vX8[a_]}, {ws}, {sY if h else sX6} offen offset:3072 sc1" for a_ in range(4) for h in range(2)]
    for i in range(3): k(yld(i))
    for i in range(7):
        mf_of = lambda a_, mt: f"{M16} {A(a_, mt)}, {w6r(i).sub(4*mt, 4)}, {Y.sub(16*i + 4*a_, 4)}, {0 if i == 0 else A(a_, mt)}"
        k(f"s_waitcnt vmcnt({q.need(('X', i))})")
        if i == 6: last_step(k, mf_of, 4, rwr); break
        sc = Sched([mf_of(a_, mt) for mt in range(4) for a_ in range(4)], 8)
        if i + 3 < 7:
            for z, x in enumerate(yld(i + 3)): sc.fix(z, x)
        k(sc.out())
    k(diag.stamp("p6"))
    finish64(hres)
    for z in range(8): k(f"v_cvt_pk_bf16_f32 {rs[z]}, {acc[2*z]}, {acc[2*z+1]}")
    for mt in range(4): k(f"buffer_store_dwordx2 {rs.sub(2*mt, 2)}, {vR}, {srd['out']}, {st0} offen offset:{32*mt}")
```

```python
from common import *
import math, os, sys, json
QSCALE = math.log2(math.e) / math.sqrt(128.0)
C0 = 2*math.sqrt(2/math.pi)*math.log2(math.e)
C1 = C0*0.044715
KNAME = "sequential_preLN__compressed_kv_cla__mixer_gmlp__prompt_kernel"
F_KV, F_CTX, F_H, F_Z, F_Y, F_RP = 0, 32, 40, 56, 70, 102
SPIN = 0x20000
LA = 8
FINE = int(os.environ.get("FINE", 0))

def nopm0(L):
    o = []
    for i, x in enumerate(L):
        o.append(x)
        if " m0," in x and i + 1 < len(L) and L[i+1].endswith("lds") or (" m0," in x and i + 1 < len(L) and " lds" in L[i+1]): o.append("s_nop 0")
    return o

class Mega:
    def __init__(self, dg=False, thr=2.0**30, stop=None):
        self.k = k = Kern(KNAME)
        self.diag = Diag(k, 0, dg); k.diag = self.diag
        self.thr = thr; self.stop = stop
        S = Alloc('s', 4, 96)
        self.srd = {n: S(4) for n in ("x", "ckv", "wq", "wuk", "wuv", "wo", "win", "wsp", "bsp", "wout", "out", "dbg", "ws")}
        self.kv = S(4)
        self.sw, self.sh, self.sj, self.sspin = S(), S(), S(), S()
        self.s0 = S.p
        self.lane, self.wv, self.l16 = R('v', 253), R('v', 252), R('v', 251)
        self.t = [R('v', 250), R('v', 249), R('v', 248)]
        self.hres = R('v', 240, 8)
        self.rare = []
    def S(self): return Alloc('s', self.s0, 96)

    def arrive(self, srd, soff):
        k = self.k; lab = k.lab("na"); t = self.t
        k(f"s_cmp_lg_u32 {self.sw}, 0", f"s_cbranch_scc1 {lab}", f"v_mov_b32 {t[0]}, 1", f"v_mov_b32 {t[1]}, 0", "s_mov_b64 exec, 1",
          f"buffer_atomic_add {t[0]}, {t[1]}, {srd}, {soff} offen sc1", "s_mov_b64 exec, -1")
        k.label(lab)
    def poll_issue(self, dst, voff, srd, soff):
        return f"buffer_load_dword {dst}, {voff}, {srd}, {soff} offen sc1"
    def poll_check(self, dst, voff, srd, soff, target):
        k = self.k; lp, ld = k.lab("sp"), k.lab("go")
        k(f"s_mov_b32 {self.sspin}, {SPIN}")
        k.label(lp)
        k(f"v_cmp_gt_u32 vcc, {target}, {dst}", f"s_cbranch_vccz {ld}", f"s_sub_u32 {self.sspin}, {self.sspin}, 1", f"s_cbranch_scc1 {ld}",
          "s_sleep 2", self.poll_issue(dst, voff, srd, soff), "s_waitcnt vmcnt(0)", f"s_branch {lp}")
        k.label(ld)
    def poll0_issue(self, dst, voff, srd, soff):
        lab = self.k.lab("pi")
        return [f"s_cmp_lg_u32 {self.sw}, 0", f"s_cbranch_scc1 {lab}", self.poll_issue(dst, voff, srd, soff), lab + ":"]
    def poll0_wait(self, dst, voff, srd, soff, target):
        k = self.k; lab = k.lab("pw")
        k(f"s_cmp_lg_u32 {self.sw}, 0", f"s_cbranch_scc1 {lab}", "s_waitcnt vmcnt(0)")
        self.poll_check(dst, voff, srd, soff, target)
        k.label(lab); k("s_barrier")
    def rowmap(self, dst, tmp):
        return [f"v_bfe_u32 {dst}, {self.lane}, 2, 2", f"v_lshlrev_b32 {dst}, 3, {dst}", f"v_and_b32 {tmp}, 3, {self.lane}", f"v_add_u32 {dst}, {dst}, {tmp}",
                f"v_and_b32 {tmp}, 1, {self.wv}", f"v_lshl_add_u32 {dst}, {tmp}, 2, {dst}", f"v_lshrrev_b32 {tmp}, 1, {self.wv}", f"v_lshl_add_u32 {dst}, {tmp}, 5, {dst}"]

    def entry(self):
        k = self.k
        k(self.diag.stamp("start"))
        k("s_cmp_ge_u32 s2, 256", f"s_cbranch_scc1 {k.name}_end")
        first = ("x", "ckv", "wuk", "wuv", "ws")
        for n in first: k(f"s_load_dwordx2 {self.srd[n][0:2]}, s[0:1], {ARG[n]}")
        for n, r in self.srd.items():
            if n not in first: k(f"s_load_dwordx2 {r[0:2]}, s[0:1], {ARG[n]}")
        for n, r in self.srd.items(): k(f"s_mov_b32 {r[2]}, {SZ[n]}", f"s_mov_b32 {r[3]}, 0x20000")
        k(f"v_and_b32 {self.lane}, 63, v0", f"v_lshrrev_b32 {self.wv}, 6, v0", f"v_lshlrev_b32 {self.l16}, 4, {self.lane}",
          f"s_and_b32 {self.sh}, s2, 31", f"s_lshr_b32 {self.sj}, s2, 5", f"v_readfirstlane_b32 {self.sw}, {self.wv}")

    def front(self):
        k, diag, srd = self.k, self.diag, self.srd
        ckv, wuk, wuv, wq, xs, ws = [srd[n] for n in ("ckv", "wuk", "wuv", "wq", "x", "ws")]
        lane, wv, l16, (t0, t1, t2) = self.lane, self.wv, self.l16, self.t
        sh, sj, sw = self.sh, self.sj, self.sw
        S = self.S(); V = Alloc('v', 1, 64)
        self.sxA, self.sxB, self.sD, self.sM = S(), S(), S(), S()
        self.s1 = S.p
        sC, sW, sQ, sm0c, sm0w, st0, st1, sKV, sxa, sxb, sF = [S() for _ in range(11)]
        q = VmQ()
        xr = V(8, 2); vX = V()
        k(f"v_and_b32 {t0}, 7, {lane}", f"v_lshlrev_b32 {t0}, 10, {t0}",
          f"v_lshrrev_b32 {t1}, 3, {lane}", f"v_lshl_add_u32 {t0}, {t1}, 4, {t0}", f"v_lshl_add_u32 {vX}, {wv}, 8, {t0}",
          f"s_lshl_b32 {st0}, s2, 13")
        vC = [V() for _ in range(8)]
        k(f"v_lshrrev_b32 {t0}, 3, {lane}", f"v_lshrrev_b32 {t1}, 4, {lane}",
          f"v_xor_b32 {t1}, {t1}, {lane}", f"v_and_b32 {t1}, 7, {t1}", f"v_lshlrev_b32 {t1}, 4, {t1}",
          f"v_lshl_add_u32 {t0}, {t0}, 10, {t1}", f"v_lshl_add_u32 {t0}, {wv}, 16, {t0}", f"v_xor_b32 {t1}, 64, {t0}")
        for i in range(8):
            ip = [0, 2, 1, 3, 4, 6, 5, 7][i]
            k(f"v_add_u32 {vC[i]}, {8192*ip - 1024*(i%4)}, {t1 if i & 1 else t0}")
        vW = [V() for _ in range(4)]
        k(f"v_bfe_u32 {t0}, {lane}, 2, 2", f"v_lshlrev_b32 {t0}, 13, {t0}",
          f"v_lshrrev_b32 {t1}, 4, {lane}", f"v_lshl_add_u32 {t0}, {t1}, 6, {t0}",
          f"v_and_b32 {t1}, 1, {lane}", f"v_lshl_add_u32 {t0}, {t1}, 5, {t0}",
          f"v_bfe_u32 {t1}, {lane}, 1, 1", f"v_lshl_add_u32 {t0}, {t1}, 4, {t0}",
          f"v_lshl_add_u32 {t0}, {wv}, 17, {t0}", f"v_xor_b32 {t1}, 16, {t0}")
        for i in range(4): k(f"v_add_u32 {vW[i]}, {31744*i}, {t1 if i & 2 else t0}")
        k(f"s_lshl_b32 {sC}, {sj}, 18", f"s_lshl_b32 {sW}, {sh}, 8", f"s_lshl_b32 {sQ}, {sh}, 8",
          f"s_lshl_b32 {sm0c}, {sw}, 13", f"s_lshl_b32 {sm0w}, {sw}, 12", "s_waitcnt lgkmcnt(0)")
        k(f"buffer_load_dwordx4 {xr[0:4]}, {vX}, {xs}, {st0} offen", f"buffer_load_dwordx4 {xr[4:8]}, {vX}, {xs}, {st0} offen offset:128")
        q.issue("x", 2)
        def dmaC(n):
            L = []
            for half in range(2):
                L.append(f"s_add_u32 m0, {sm0c}, {(n & 1)*32768 + 4096*half}")
                L += [f"buffer_load_dwordx4 {vC[4*half+i]}, {ckv}, {sC} offen offset:{1024*i} lds" for i in range(4)]
            L.append(f"s_add_u32 {sC}, {sC}, 128"); q.issue(("C", n), 8); return L
        def dmaW(n):
            L = []
            for mat, sr in enumerate((wuk, wuv)):
                L.append(f"s_add_u32 m0, {sm0w}, {65536 + (n % 3)*32768 + 16384*mat}")
                L += [f"buffer_load_dwordx4 {vW[i]}, {sr}, {sW} offen offset:{1024*i} lds" for i in range(4)]
            L.append(f"s_add_u32 {sW}, {sW}, {64*8192}"); q.issue(("W", n), 8); return L
        QREG = [128, 144, 0, 16, 64, 80, 96, 112]
        def dmaQ(p):
            L = []
            for n in (2*p, 2*p + 1):
                L.append(f"s_add_u32 m0, {sm0w}, {QREG[n]*1024}")
                L += [f"buffer_load_dwordx4 {vW[i]}, {wq}, {sQ} offen offset:{1024*i} lds" for i in range(4)]
                L.append(f"s_add_u32 {sQ}, {sQ}, {64*8192}")
            q.issue(("Q", p), 8); return L
        k(nopm0(dmaC(0)), nopm0(dmaW(0)), nopm0(dmaC(1)), nopm0(dmaW(1)))
        tv = V(); tc = V(); dummy = V(); zz = R('v', 208, 4); vz = V()
        pc = R('s', S(2).b, 2); here = k.lab("pc"); sT0, sT1 = S(), S()
        k(f"s_getpc_b64 {pc}"); k.label(here)
        k(f"v_lshrrev_b32 {t0}, 1, v0", f"v_and_b32 {t0}, 63, {t0}", f"v_lshlrev_b32 {t0}, 13, {t0}", f"v_and_b32 {t1}, 1, v0", f"v_lshl_add_u32 {tv}, {t1}, 7, {t0}",
          f"s_lshl_b32 {sT0}, {sj}, 19", f"s_lshl_b32 {st1}, {sh}, 8", f"s_add_u32 {sT0}, {sT0}, {st1}",
          f"v_and_b32 {t0}, 15, {lane}", f"v_lshl_add_u32 {t0}, {wv}, 4, {t0}", f"v_lshlrev_b32 {tc}, 7, {t0}", f"s_lshl_b32 {sT1}, s2, 13")
        labv, labd = k.lab("tv"), k.lab("td")
        touch_w = [f"s_cmp_ge_u32 {sw}, 2", f"s_cbranch_scc1 {labv}", f"buffer_load_dword {dummy}, {tv}, {wuk}, {sT0} offen", f"s_branch {labd}",
                   labv + ":", f"buffer_load_dword {dummy}, {tv}, {wuv}, {sT0} offen", labd + ":"]
        touch_c = [f"buffer_load_dword {dummy}, {tc}, {ckv}, {sT1} offen"]
        touch_q = [f"buffer_load_dword {dummy}, {tv}, {wq}, {sT0} offen"]
        k(f"v_and_b32 {t0}, 7, {lane}", f"v_lshl_add_u32 {t0}, {wv}, 3, {t0}", f"v_lshlrev_b32 {t0}, 7, {t0}",
          f"s_lshr_b32 {sF}, s2, 3", f"s_lshl_b32 {sF}, {sF}, 12", f"v_add_u32 {t0}, {sF}, {t0}",
          f"v_min_u32 {t0}, {k.name}_last-{here}, {t0}", f"global_load_dword {dummy}, {t0}, {pc}")
        q.issue("T", 1)
        k(f"s_lshl_b32 {st1}, s2, 7", f"s_add_u32 {st1}, {st1}, {WS_FLAG}", f"v_lshl_add_u32 {t0}, v0, 4, {st1}",
          f"s_lshl_b32 {st1}, s2, 10", f"s_add_u32 {st1}, {st1}, {WS_STZ - 1024}", f"v_lshl_add_u32 {t1}, v0, 4, {st1}",
          f"v_mov_b32 {vz}, 0x7ffffff0", "v_cmp_gt_u32 vcc, 8, v0", f"v_sub_u32 {zz[0]}, 0, {wv}", f"v_mov_b32 {zz[1]}, {zz[0]}", f"v_cndmask_b32 {vz}, {vz}, {t0}, vcc",
          f"v_cmp_eq_u32 vcc, 1, {wv}", f"v_mov_b32 {zz[2]}, {zz[0]}", f"v_mov_b32 {zz[3]}, {zz[0]}", f"v_cndmask_b32 {vz}, {vz}, {t1}, vcc")
        zinit = [f"buffer_store_dwordx4 {zz}, {vz}, {ws}, 0 offen sc1"]
        rC = [V(), V()]; rW = [V(), V(), V(), V()]
        rQ = [R('v', 192 + i) for i in range(6)]
        k(f"v_and_b32 {t0}, 15, {lane}", f"v_lshrrev_b32 {t1}, 1, {t0}", f"v_lshrrev_b32 {t2}, 4, {lane}",
          f"v_xor_b32 {t1}, {t1}, {t2}", f"v_lshlrev_b32 {t1}, 4, {t1}", f"v_lshl_add_u32 {t0}, {t0}, 7, {t1}",
          f"v_lshrrev_b32 {t1}, 1, {wv}", f"v_lshl_add_u32 {rC[0]}, {t1}, 14, {t0}", f"v_xor_b32 {rC[1]}, 64, {rC[0]}")
        k(f"v_lshlrev_b32 {t0}, 11, {t2}", f"v_bfe_u32 {t1}, {lane}, 2, 2", f"v_lshl_add_u32 {t0}, {t1}, 6, {t0}",
          f"v_and_b32 {t1}, 1, {t2}", f"v_lshl_add_u32 {t0}, {t1}, 5, {t0}",
          f"v_and_b32 {t1}, 1, {lane}", f"v_lshl_add_u32 {rQ[0]}, {t1}, 4, {t0}", f"v_bfe_u32 {t1}, {lane}, 1, 1", f"v_lshl_add_u32 {rQ[0]}, {t1}, 3, {rQ[0]}",
          f"v_xor_b32 {rQ[1]}, 32, {rQ[0]}",
          f"v_and_b32 {t1}, 3, {lane}", f"v_lshl_add_u32 {t0}, {t1}, 3, {t0}",
          f"v_and_b32 {t1}, 1, {wv}", f"v_lshl_add_u32 {t0}, {t1}, 9, {t0}",
          f"v_add_u32 {rW[0]}, 0x10000, {t0}", f"v_xor_b32 {rW[1]}, 32, {rW[0]}",
          f"v_add_u32 {rW[2]}, 0x10000, {rW[0]}", f"v_add_u32 {rW[3]}, 0x10000, {rW[1]}")
        for z in range(2, 6): k(f"v_add_u32 {rQ[z]}, 0x10000, {rQ[z-2]}")
        F = [R('v', 128, 64), R('v', 64, 64)]
        def cf(st, kt): return F[st].sub(4*kt, 4)
        def wf(st, ct): return F[st].sub(32 + 4*ct, 4)
        def reads(i):
            n, ks, st = i >> 1, i & 1, i & 1
            ws_ = n % 3; L = []
            for z in range(8):
                mat, Pl, u = z >> 2, (z >> 1) & 1, z & 1
                for t in range(2):
                    L.append(f"ds_read_b64_tr_b16 {wf(st, z).sub(2*t, 2)}, {rW[2*(ws_ >> 1) + u]} offset:{(ws_ & 1)*32768 + mat*16384 + ks*8192 + t*1024 + Pl*256}")
                L.append(f"ds_read_b128 {cf(st, z)}, {rC[ks]} offset:{(n & 1)*32768 + z*2048}")
            return L
        def acc(kt, ct): return R('a', (kt*8 + ct)*4, 4)
        def mfmas(i):
            st = i & 1; L = []
            for ct in range(8):
                for kt in range(8):
                    d = acc(kt, ct); c = 0 if i == 0 else d
                    if ct < 4: L.append(f"{M16} {d}, {wf(st, ct)}, {cf(st, kt)}, {c}")
                    else:      L.append(f"{M16} {d}, {cf(st, kt)}, {wf(st, ct)}, {c}")
            return L
        xf = V(16); s1, s2_, u0, u1 = V(), V(), V(), V(); pr = R('v', 200, 8); vL = V()
        k(f"s_waitcnt vmcnt({q.need('x')})")
        for z in range(8): k(f"v_lshlrev_b32 {xf[2*z]}, 16, {xr[z]}", f"v_and_b32 {xf[2*z+1]}, 0xffff0000, {xr[z]}")
        k(f"v_add_f32 {s1}, {xf[0]}, {xf[1]}", f"v_mul_f32 {s2_}, {xf[0]}, {xf[0]}", f"v_fmac_f32 {s2_}, {xf[1]}, {xf[1]}")
        for z in range(2, 16): k(f"v_add_f32 {s1}, {s1}, {xf[z]}", f"v_fmac_f32 {s2_}, {xf[z]}, {xf[z]}")
        k("s_nop 1", f"v_add_f32_dpp {s1}, {s1}, {s1} row_ror:8 row_mask:0xf bank_mask:0xf", f"v_add_f32_dpp {s2_}, {s2_}, {s2_} row_ror:8 row_mask:0xf bank_mask:0xf")
        for sw_ in ("v_permlane16_swap_b32", "v_permlane32_swap_b32"):
            k(f"v_mov_b32 {u0}, {s1}", f"v_mov_b32 {u1}, {s2_}", "s_nop 0", f"{sw_} {u0}, {s1}", f"{sw_} {u1}, {s2_}",
              f"v_add_f32 {s1}, {s1}, {u0}", f"v_add_f32 {s2_}, {s2_}, {u1}")
        k(f"v_and_b32 {u0}, 7, {lane}", f"v_lshlrev_b32 {u0}, 5, {u0}", f"v_add_u32 {u0}, 0x20000, {u0}", f"v_lshl_add_u32 {vL}, {wv}, 12, {u0}",
          f"v_bfe_u32 {u1}, {lane}, 3, 2", f"v_lshl_add_u32 {u0}, {u1}, 12, {u0}", f"v_lshl_add_u32 {u0}, {wv}, 2, {u0}",
          f"ds_write2_b32 {u0}, {s1}, {s2_} offset0:0 offset1:4")
        ln2 = [f"v_add_f32 {s1}, {pr[0]}, {pr[1]}", f"v_add_f32 {s2_}, {pr[4]}, {pr[5]}", f"v_add_f32 {u0}, {pr[2]}, {pr[3]}", f"v_add_f32 {u1}, {pr[6]}, {pr[7]}",
               f"v_add_f32 {s1}, {s1}, {u0}", f"v_add_f32 {s2_}, {s2_}, {u1}",
               f"v_mul_f32 {s1}, {f2u(1/512)}, {s1}", f"v_mul_f32 {s2_}, {f2u(1/512)}, {s2_}",
               f"v_fma_f32 {s2_}, -{s1}, {s1}, {s2_}", f"v_max_f32 {s2_}, 0, {s2_}", f"v_add_f32 {s2_}, {f2u(1e-5)}, {s2_}",
               f"v_rsq_f32 {s2_}, {s2_}", "v_nop", f"v_mul_f32 {s2_}, {f2u(QSCALE)}, {s2_}", f"v_mul_f32 {s1}, {s1}, {s2_}"]
        for z in range(16): ln2 += [f"v_fma_f32 {xf[z]}, {xf[z]}, {s2_}, -{s1}"]
        for z in range(8): ln2 += [f"v_cvt_pk_bf16_f32 {xr[z]}, {xf[2*z]}, {xf[2*z+1]}"]
        ln2 += [f"v_lshrrev_b32 {u0}, 3, {lane}", f"v_lshlrev_b32 {u0}, 8, {u0}", f"v_and_b32 {u1}, 7, {lane}", f"v_lshl_add_u32 {u0}, {u1}, 4, {u0}",
                f"v_lshl_add_u32 {vX}, {wv}, 12, {u0}"]
        ln3 = [f"s_lshr_b32 {sF}, s2, 1", f"s_lshl_b32 {sF}, {sF}, 14", f"s_and_b32 {st1}, s2, 1", f"s_lshl_b32 {st1}, {st1}, 7", f"s_add_u32 {sF}, {sF}, {st1}",
               f"buffer_store_dwordx4 {xr[0:4]}, {vX}, {ws}, {sF} offen sc1", f"buffer_store_dwordx4 {xr[4:8]}, {vX}, {ws}, {sF} offen offset:2048 sc1"]
        X = R('v', 128, 64); Wr = R('v', 200, 24); NWR = 6; LW = 4
        tm = R('v', 224, 8); ob = [R('v', 232, 4), R('v', 236, 4)]
        vK, vV, vXb, vP, vPd = R('v', 198), R('v', 199), R('v', 240), R('v', 241), R('v', 242)
        setup = [f"v_lshrrev_b32 {t2}, 4, {lane}",
          f"v_bfe_u32 {t0}, {lane}, 3, 1", f"v_lshlrev_b32 {t0}, 8, {t0}", f"v_and_b32 {t1}, 7, {lane}", f"v_lshl_add_u32 {t0}, {t1}, 4, {t0}",
          f"v_lshrrev_b32 {t1}, 1, {wv}", f"v_lshl_add_u32 {t0}, {t1}, 16, {t0}",
          f"v_lshl_add_u32 {vK}, {t2}, 9, {t0}", f"v_and_b32 {t1}, 1, {wv}", f"v_lshl_add_u32 {vK}, {t1}, 12, {vK}",
          f"v_lshl_add_u32 {vV}, {t1}, 11, {t0}", f"v_and_b32 {t1}, 1, {t2}", f"v_lshl_add_u32 {vV}, {t1}, 9, {vV}",
          f"v_lshrrev_b32 {t1}, 1, {t2}", f"v_lshl_add_u32 {vV}, {t1}, 12, {vV}",
          f"v_add_u32 {vXb}, 16384, {l16}", f"v_mov_b32 {vP}, 0",
          f"s_lshl_b32 {st0}, {sh}, 20", f"s_add_u32 {st0}, {st0}, {WS_KV}",
          [f"s_add_u32 {self.kv[0]}, {ws[0]}, {st0}", f"s_addc_u32 {self.kv[1]}, {ws[1]}, 0"],
          f"s_sub_u32 {st1}, 16, {sj}", f"s_lshl_b32 {self.kv[2]}, {st1}, 16", f"s_mov_b32 {self.kv[3]}, 0x20000",
          f"s_lshl_b32 {st1}, {sj}, 17", f"s_add_u32 {sKV}, {st0}, {st1}",
          f"s_lshl_b32 {st0}, {sj}, 2", f"s_add_u32 {self.sxA}, {st0}, {sw}", f"s_sub_u32 {st0}, 60, {st0}", f"s_add_u32 {self.sxB}, {st0}, {sw}",
          f"s_lshl_b32 {sxa}, {self.sxA}, 15", f"s_lshl_b32 {sxb}, {self.sxB}, 15"]
        def xld(i):
            r = X.sub(16*(i % 4), 16); q.issue(("X", i), 4)
            L = [f"buffer_load_dwordx4 {r.sub(4*z, 4)}, {vXb if z & 1 else l16}, {ws}, {sxa if z >> 1 else sxb} offen offset:{1024*(i % 4)} sc1" for z in range(4)]
            if i % 4 == 3: L += [f"s_add_u32 {sxa}, {sxa}, 4096", f"s_add_u32 {sxb}, {sxb}, 4096"]
            return L
        def qread(f):
            i, dt = f >> 3, f & 7; base = QREG[i >> 1]*1024; P, u = dt >> 1, dt & 1
            r = rQ[2*(base >> 16) + u]; base &= 0xffff
            return [f"ds_read_b64_tr_b16 {Wr.sub(4*(f % NWR) + 2*t, 2)}, {r} offset:{base + (i & 1)*8192 + t*1024 + P*256}" for t in range(2)]
        k(f"s_waitcnt vmcnt({q.need(('C', 0), ('W', 0))}) lgkmcnt(0)", "s_barrier")
        k(diag.stamp("tile0"))
        k(f"ds_read_b128 {pr[0:4]}, {vL}", f"ds_read_b128 {pr[4:8]}, {vL} offset:16")
        k(reads(0))
        for i in range(16):
            sc = Sched(mfmas(i), 8)
            if i & 1:
                n = (i + 1) // 2
                tags = [("C", n), ("W", n)] if n < 8 else [("Q", 0), ("Q", 1)]
                if i == 5: tags += ["XN", "Z"]
                if i == 13: tags += ["P0"]
                k(f"s_waitcnt vmcnt({q.need(*tags)}) lgkmcnt(0)", "s_barrier")
            else: k("s_waitcnt lgkmcnt(0)")
            if FINE: k(diag.stamp(f"a{i}"))
            if i == 5:
                self.arrive(srd["dbg"], 0);
            if i == 13: self.poll_check(vPd, vP, srd["dbg"], 0, 256)
            if i < 15:
                for z, x in enumerate(reads(i + 1)): sc.fix(2*z + 1, x)
            if i == 1:
                sc.scatter(ln3, 0, 14, mingap=2); q.issue("XN", 2); sc.fix(13, zinit); q.issue("Z")
            if i == 11: sc.fix(0, self.poll_issue(vPd, vP, srd["dbg"], 0)); q.issue("P0")
            if i == 15:
                xl = xld(0) + xld(1) + xld(2)
                sc.scatter(xl, 0, 24)
            if i & 1: d = dmaC((i + 1)//2 + 1) if i < 13 else dmaQ(1 if i == 13 else 3)
            else: d = dmaW(i//2 + 2) if i < 12 else dmaQ(0 if i == 12 else 2)
            lo = 14 if i == 1 else 24 if i == 15 else 2
            pos = [lo + ((60 - lo)*z // len(d)) // 2 * 2 for z in range(len(d))]
            for z, x in enumerate(d): sc.fix(pos[z], x)
            if i == 0: sc.fix(60, touch_c); sc.fix(62, touch_w); q.issue("T", 2)
            if i == 4: sc.fix(62, touch_q); q.issue("T")
            if i == 0: sc.flow([(x, 0) for x in ln2])
            if i == 6:
                for z, x in enumerate(setup): sc.fix(2*z, x, where="val")
            if i == 15:
                for f in range(LW):
                    for t, x in enumerate(qread(f)): sc.fix(41 + 4*f + 2*t, x)
            k(sc.out())
        k(diag.stamp("kvproj"))
        chunks = []
        def chunk(ta, tb, voff, soff, imm):
            oo = ob[len(chunks) % 2]; L = []
            for e in range(4): L.append(f"v_accvgpr_read_b32 {tm[e]}, {ta[e]}")
            for e in range(4): L.append(f"v_accvgpr_read_b32 {tm[4+e]}, {tb[e]}")
            for e in range(4): L.append(f"v_cvt_pk_bf16_f32 {oo[e]}, {tm[2*e]}, {tm[2*e+1]}")
            chunks.append((soff, L, f"buffer_store_dwordx4 {oo}, {voff}, {ws}, {st1} offen offset:{imm} sc1"))
        for p in range(4):
            for b in range(2):
                for Pl in range(2):
                    chunk(acc(2*p + b, 2*Pl), acc(2*p + b, 2*Pl + 1), vK, (p >> 1)*32768 + (p & 1)*8192, Pl*2048 + b*128)
        for p in range(4):
            for Pl in range(2):
                for u in range(2):
                    chunk(acc(2*p, 4 + 2*Pl + u), acc(2*p + 1, 4 + 2*Pl + u), vV, 16384 + (p >> 1)*32768 + (p & 1)*8192, Pl*1024 + u*128)
        def qacc(qt, dt): return R('v', 32*qt + 4*dt, 4)
        ci = 0; cur = None
        for i in range(16):
            mf = []
            for dt in range(8):
                for qt in range(4):
                    d = qacc(qt, dt)
                    mf.append(f"{M16} {d}, {Wr.sub(4*((8*i + dt) % NWR), 4)}, {X.sub(16*(i % 4) + 4*qt, 4)}, {0 if i == 0 else d}")
            sc = Sched(mf, 8)
            tags = [("X", i)]
            if i == 7: tags += [("Q", 2), ("Q", 3)]
            if i == 13: tags += ["ST"]
            k(f"s_waitcnt vmcnt({q.need(*tags)}) lgkmcnt({2*(LW - 2)})")
            if i in (7, 13): k("s_barrier")
            if FINE: k(diag.stamp(f"q{i}"))
            if i == 13:
                k(f"s_lshl_b32 {sF}, {sh}, 7", f"s_add_u32 {sF}, {sF}, {WS_FLAG + F_KV*128}"); self.arrive(ws, sF)
            for dt in range(8):
                f = 8*i + dt + LW
                if f < 128:
                    a_, b_ = qread(f); sc.fix(4*dt, a_); sc.fix(4*dt + 1, b_)
                if dt % 2 == 0 and dt > 0:
                    issued = min(8*i + dt + LW, 128)
                    sc.fix(4*dt - 1, f"s_waitcnt lgkmcnt({2*max(0, issued - (8*i + dt + 2))})")
            ev = []
            if i + 3 < 16:
                xl = xld(i + 3); q.q = q.q[:-4]
                for z, x in enumerate(xl):
                    g = 2 + 4*z
                    sc.fix(g, x)
                    if z < 4: ev.append((g, ("X", i + 3)))
            for c in range(3):
                if ci < 32:
                    soff, L, st_ = chunks[ci]; ci += 1
                    lo, hi = (0, 10, 21)[c], (10, 21, 31)[c]
                    if i == 0 and c == 0: lo = 2
                    if soff != cur: sc.fix(hi - 1, f"s_add_u32 {st1}, {sKV}, {soff}"); cur = soff
                    sc.flow([(x, 0) for x in L], lo, hi)
                    sc.fix(hi, st_); ev.append((hi + 0.5, "ST"))
            if i == 15: sc.fix(8, self.poll0_issue(vPd, vP, ws, sF))
            for g, tag in sorted(ev): q.issue(tag)
            k(sc.out())
        k(diag.stamp("qproj"))
        self.rp_setup()
        self.poll0_wait(vPd, vP, ws, sF, 8)
        k(diag.stamp("kvwait"))
        self.att_regs()
        k(f"v_lshl_add_u32 {self.vd[0]}, {wv}, 13, {l16}", f"v_add_u32 {self.vd[1]}, 4096, {self.vd[0]}",
          f"s_add_u32 m0, {sm0w}, {144*1024}", f"s_add_u32 {self.sM}, {sm0c}, 32768", f"s_mov_b32 {self.sD}, 16384")
        k([f"buffer_load_dwordx4 {l16}, {self.kv}, {sm0w} offen offset:{1024*i} sc1 lds" for i in range(4)])
        k(nopm0(self.dma_c(0)), nopm0(self.dma_c(1)), f"s_xor_b32 {self.sM}, {self.sM}, 0x10000")
        tq = R('v', 128, 16); z = 0; pend = []
        for Xb, q0 in (('B', 0), ('A', 2)):
            for dt in range(8):
                P, u = dt >> 1, dt & 1
                r = tq.sub(4*(z % 4), 4); z += 1
                a0, a1 = qacc(q0, dt), qacc(q0 + 1, dt)
                k(f"v_cvt_pk_bf16_f32 {r[0]}, {a0[0]}, {a0[1]}", f"v_cvt_pk_bf16_f32 {r[1]}, {a0[2]}, {a0[3]}",
                  f"v_cvt_pk_bf16_f32 {r[2]}, {a1[0]}, {a1[1]}", f"v_cvt_pk_bf16_f32 {r[3]}, {a1[2]}, {a1[3]}")
                k(pend)
                Q = self.Q[Xb]
                pend = [f"v_permlane16_swap_b32 {r[0]}, {r[2]}", f"v_permlane16_swap_b32 {r[1]}, {r[3]}",
                        f"v_accvgpr_write_b32 {Q[8*P + 2*u]}, {r[0]}", f"v_accvgpr_write_b32 {Q[8*P + 2*u + 1]}, {r[1]}",
                        f"v_accvgpr_write_b32 {Q[8*P + 4 + 2*u]}, {r[2]}", f"v_accvgpr_write_b32 {Q[8*P + 4 + 2*u + 1]}, {r[3]}"]
        k(pend)

    def att_regs(self):
        self.Sb = {('B', 0): R('v', 0, 32), ('B', 1): R('v', 32, 32), ('A', 0): R('v', 64, 32), ('A', 1): R('v', 96, 32)}
        self.PB0 = [R('v', 128, 4), R('v', 132, 4)]
        self.PB = R('v', 136, 12); self.PA = R('v', 148, 16)
        self.negm = {'B': R('v', 164, 16), 'A': R('v', 180, 16)}
        self.tmp = R('v', 196, 8)
        V = Alloc('v', 204, 240)
        self.l = {'A': V(), 'B': V()}; self.ls = {'A': V(), 'B': V()}; self.thrq = {'A': V(), 'B': V()}
        self.rd = V(); self.vd = [V(), V()]; self.ninf = V(); self.vst = V(); self.tch = V(); self.dummy = V()
        self.O = {'A': R('a', 0, 64), 'B': R('a', 64, 64)}
        self.Q = {'A': R('a', 128, 32), 'B': R('a', 160, 32)}
        self.ring = R('a', 192, 64)
    def P(self, X, ks, par):
        if X == 'A': return self.PA.sub(4*ks, 4)
        return self.PB0[par] if ks == 0 else self.PB.sub(4*(ks - 1), 4)
    def fr(self, f): return self.ring.sub(4*(f % 16), 4)
    def dma_c(self, par):
        L = []
        for hf in range(2):
            L.append(f"s_add_u32 m0, {self.sM}, {par*32768 + hf*4096}")
            L += [f"buffer_load_dwordx4 {self.vd[hf]}, {self.kv}, {self.sD} offen offset:{1024*i} sc1 lds" for i in range(4)]
        L.append(f"s_add_u32 {self.sD}, {self.sD}, 32768")
        return L
    def maskinit(self, X, par, src):
        L = []; Sx = self.Sb[(X, par)]; th = self.t[2]
        L.append(f"v_subrev_u32 {th}, {self.sT}, {self.thrq[X]}")
        items = []
        for e in range(32):
            off = 32*(e >> 4) + 8*((e & 15) >> 2) + (e & 3)
            items.append((f"v_cmp_le_i32 {self.mk[e % 4]}, {off}, {th}", f"v_cndmask_b32 {Sx[e]}, {self.ninf}, {src}, {self.mk[e % 4]}"))
        for e in range(34):
            L.append(items[e][0] if e < 32 else "v_nop")
            if e >= 2: L.append(items[e-2][1])
        return L
    def softmax(self, blocks, par, pv_last):
        el = [(X, 8*ks + e) for ks in range(4) for X in blocks for e in range(8)]
        it = []; n = len(el); tm = self.tmp
        def post(z):
            X, e = el[z]; o = []
            if e == 1: o.append((f"v_add_f32 {self.ls[X]}, {tm[(z-1) % 8]}, {tm[z % 8]}", 0))
            elif e > 1: o.append((f"v_add_f32 {self.ls[X]}, {self.ls[X]}, {tm[z % 8]}", 0))
            if e & 1:
                ks = e >> 3
                early = 0 if (X == 'B' and ks == 0) else pv_last.get((X, ks), 0)
                o.append((f"v_cvt_pk_bf16_f32 {self.P(X, ks, par)[(e & 7) >> 1]}, {tm[(z-1) % 8]}, {tm[z % 8]}", early))
            return o
        for z in range(n):
            X, e = el[z]
            it.append((f"v_exp_f32 {tm[z % 8]}, {self.Sb[(X, par)][e]}", 0))
            if z >= 1: it += post(z - 1)
        return it + post(n - 1)
    def rdfrag(self, grp, f):
        kind, sp = grp
        return f"ds_read_b128 {self.fr(f)}, {self.rd} offset:{sp*32768 + (16384 if kind == 'K' else 0) + 1024*f}"
    def iteration(self, par, pv="", sm="", qk="", mask="", nxt=None, extra=None, name="", newslot_next=False, dma=True, zero=False, vm=8):
        k = self.k
        mf = []; use = []; pv_last = {}
        G = ([('V', par ^ 1)] if pv else []) + ([('K', par)] if qk else [])
        gi = 0
        if pv:
            for ks in range(4):
                for dt in range(4):
                    for z, X in enumerate(pv):
                        d = self.O[X].sub(16*dt, 16)
                        mf.append(f"{M32} {d}, {self.fr(4*ks + dt)}, {self.P(X, ks, par ^ 1)}, {d}")
                        use.append(16*gi + 4*ks + dt if z == 0 else None)
                        pv_last[(X, ks)] = len(mf) - 1
            gi += 1
        qk0 = len(mf)
        if qk:
            for kt in range(2):
                for s_ in range(8):
                    for z, X in enumerate(qk):
                        d = self.Sb[(X, par ^ 1)].sub(16*kt, 16)
                        c = d if (s_ > 0 or X in mask) else (0 if zero else self.negm[X])
                        mf.append(f"{M32} {d}, {self.fr(8*kt + s_)}, {self.Q[X].sub(4*s_, 4)}, {c}")
                        use.append(16*gi + 8*kt + s_ if z == 0 else None)
            gi += 1
        sc = Sched(mf)
        allg = G + ([nxt] if nxt else []); nf = 16*len(G); bar_at = None
        for i, u in enumerate(use):
            if u is None: continue
            F = u + LA
            if F >= nf + (LA if nxt else 0): continue
            grp = allg[F // 16]
            if F % 16 == 0 and ((grp[0] == 'K') or (F >= nf and newslot_next)):
                sc.fix(i, f"s_waitcnt vmcnt({vm})", "s_barrier"); bar_at = i
                if grp[1] == 0: sc.fix(i - 1, f"v_xor_b32 {self.rd}, 0x10000, {self.rd}", where="post")
                dpar = grp[1]
            sc.fix(i, self.rdfrag(grp, F % 16))
        for i, u in enumerate(use):
            if u is None or u % 4: continue
            n = max(0, min(u + LA, nf + (LA if nxt else 0)) - (u + 4))
            if i == 0: k(f"s_waitcnt lgkmcnt({n})")
            else: sc.fix(i - 1, f"s_waitcnt lgkmcnt({n})")
        if bar_at is not None and dma:
            d = self.dma_c(dpar)
            if dpar == 1: d.append(f"s_xor_b32 {self.sM}, {self.sM}, 0x10000")
            hi = min(len(mf), bar_at + 1 + 2*len(d))
            if hi - bar_at - 1 >= len(d): sc.scatter(d, bar_at + 1, hi)
            else: sc.scatter(nopm0(d), bar_at + 1, hi, mingap=0)
        if mask:
            m = []
            for X in mask: m += self.maskinit(X, par ^ 1, 0 if zero else self.negm[X][0])
            if qk0 >= 8: sc.flow([(x, 0) for x in m], 0, qk0 - 1)
            else: k(m, "s_nop 1")
        if qk: sc.fix(len(mf) - 1, f"s_add_u32 {self.sT}, {self.sT}, 64")
        if extra: extra(sc)
        if sm:
            it = self.softmax(sm, par, pv_last)
            if len(sm) == 2: it.append((f"v_max_f32 {self.t[0]}, {self.ls['A']}, {self.ls['B']}", 0)); cv = self.t[0]
            else: cv = self.ls[sm]
            it.append((f"v_cmp_lt_f32 vcc, {self.sthr}, {cv}", 0))
            sc.flow(it)
        k(sc.out())
        if sm:
            lr, lb = k.lab("rare"), k.lab("back")
            k(f"s_cbranch_vccnz {lr}"); k.label(lb)
            for X in sm: k(f"v_add_f32 {self.l[X]}, {self.l[X]}, {self.ls[X]}")
            self.rare.append((lr, lb, sm, par))
    def rowmax(self, Sx, dst):
        t1 = self.t[1]
        L = [f"v_max3_f32 {dst}, {Sx[0]}, {Sx[1]}, {Sx[2]}", f"v_max3_f32 {t1}, {Sx[3]}, {Sx[4]}, {Sx[5]}"]
        for z in range(6, 32, 4):
            L.append(f"v_max3_f32 {dst}, {dst}, {Sx[z]}, {Sx[z+1]}")
            if z + 3 < 32: L.append(f"v_max3_f32 {t1}, {t1}, {Sx[z+2]}, {Sx[z+3]}")
        L += [f"v_max_f32 {dst}, {dst}, {t1}", f"v_mov_b32 {t1}, {dst}", "s_nop 1", f"v_permlane32_swap_b32 {t1}, {dst}", f"v_max_f32 {dst}, {dst}, {t1}"]
        return L
    def emit_rare(self):
        k = self.k; subs = {}; rets = {}
        for lr, lb, sm, par in self.rare:
            k.label(lr)
            for X in sm:
                sub = subs.setdefault((X, par), k.lab(f"fix{X}{par}"))
                here = k.lab("pc"); after = k.lab("ret")
                k(f"s_getpc_b64 {self.tgt}"); k.label(here)
                k(f"s_add_u32 {self.tgt[0]}, {self.tgt[0]}, {sub}-{here}", f"s_addc_u32 {self.tgt[1]}, {self.tgt[1]}, 0",
                  f"s_swappc_b64 {self.ret}, {self.tgt} ; ->{sub}")
                k.label(after); rets.setdefault((X, par), []).append(after)
            k(f"s_branch {lb}")
        for (X, par), sub in subs.items():
            k.label(sub)
            Sc, Sn = self.Sb[(X, par)], self.Sb[(X, par ^ 1)]; d, f = self.t[0], self.t[2]; tm = self.tmp
            k("s_nop 15", self.rowmax(Sc, d))
            k(f"v_max_f32 {d}, 0, {d}", f"v_sub_f32 {f}, 0, {d}", f"v_exp_f32 {f}, {f}")
            for e in range(16): k(f"v_sub_f32 {self.negm[X][e]}, {self.negm[X][e]}, {d}")
            for e in range(32): k(f"v_sub_f32 {Sc[e]}, {Sc[e]}, {d}", f"v_sub_f32 {Sn[e]}, {Sn[e]}, {d}")
            k(f"v_mul_f32 {self.l[X]}, {self.l[X]}, {f}")
            for e in range(64):
                k(f"v_accvgpr_read_b32 {tm[0]}, {self.O[X][e]}", f"v_mul_f32 {tm[0]}, {tm[0]}, {f}", f"v_accvgpr_write_b32 {self.O[X][e]}, {tm[0]}")
            k([x for x, _ in self.softmax(X, par, {})])
            k("s_nop 1", f"s_setpc_b64 {self.ret} ; " + " ".join("->" + r for r in rets[(X, par)]))
    def epilogue(self, X):
        k, t, st, tm = self.k, self.t, self.st, self.tmp
        sx = self.sxA if X == 'A' else self.sxB; l = self.l[X]
        k(f"v_mov_b32 {t[0]}, {l}", f"s_lshl_b32 {st[0]}, {sx}, 18", f"s_lshl_b32 {st[1]}, {self.sh}, 12",
          f"v_permlane32_swap_b32 {t[0]}, {l}", f"s_add_u32 {st[0]}, {st[0]}, {st[1]}", f"s_add_u32 {st[0]}, {st[0]}, {WS_CTX}",
          f"v_add_f32 {t[0]}, {t[0]}, {l}", f"v_rcp_f32 {t[0]}, {t[0]}", "s_nop 7")
        ob = self.PA if X == 'A' else self.Sb[(X, 0)]
        for c in range(8):
            o = ob.sub(4*(c % 4), 4)
            for e in range(8): k(f"v_accvgpr_read_b32 {tm[e]}, {self.O[X][8*c + e]}")
            for e in range(8): k(f"v_mul_f32 {tm[e]}, {tm[e]}, {t[0]}")
            for e in range(4): k(f"v_cvt_pk_bf16_f32 {o[e]}, {tm[2*e]}, {tm[2*e+1]}")
            k(f"buffer_store_dwordx4 {o}, {self.vst}, {self.srd['ws']}, {st[0]} offen offset:{512*c} sc1")
    def attention(self):
        k, t, lane, srd = self.k, self.t, self.lane, self.srd
        S = Alloc('s', self.s1, 96)
        self.sT, self.sN, self.sthr = S(), S(), S(); self.st = st = [S(), S()]
        self.mk = [S(2), S(2), S(2), S(2)]; self.ret = S(2); self.tgt = S(2)
        it = self.iteration; Vg = lambda p: ('V', p)
        k(f"v_add_u32 {self.rd}, 0x18000, {self.l16}", f"s_mov_b32 {self.sthr}, {f2u(self.thr)}", f"v_mov_b32 {self.ninf}, 0xff800000",
          f"v_and_b32 {t[0]}, 31, {lane}", f"v_lshrrev_b32 {t[1]}, 5, {lane}", f"v_lshlrev_b32 {t[1]}, 2, {t[1]}", f"v_sub_u32 {t[0]}, {t[0]}, {t[1]}",
          f"s_lshl_b32 {st[0]}, {self.sxA}, 5", f"s_lshl_b32 {st[1]}, {self.sxB}, 5",
          f"v_add_u32 {self.thrq['A']}, {st[0]}, {t[0]}", f"v_add_u32 {self.thrq['B']}, {st[1]}, {t[0]}", f"s_mov_b32 {self.sT}, 0")
        k("s_waitcnt vmcnt(16)", "s_barrier")
        for f in range(LA): k(self.rdfrag(('K', 1), f))
        init = [f"v_bfe_u32 {t[0]}, {lane}, 2, 1", f"v_lshlrev_b32 {t[0]}, 17, {t[0]}",
                f"v_lshrrev_b32 {t[1]}, 5, {lane}", f"v_lshl_add_u32 {t[0]}, {t[1]}, 8, {t[0]}",
                f"v_bfe_u32 {t[1]}, {lane}, 3, 2", f"v_lshl_add_u32 {t[0]}, {t[1]}, 6, {t[0]}",
                f"v_and_b32 {t[1]}, 3, {lane}", f"v_lshl_add_u32 {self.vst}, {t[1]}, 4, {t[0]}",
                f"v_mov_b32 {self.tch}, 0"]
        for X in "AB":
            init.append(f"v_mov_b32 {self.l[X]}, 0")
            for e in range(64): init.append(f"v_accvgpr_write_b32 {self.O[X][e]}, 0")
        it(1, qk="BA", mask="A", nxt=('K', 0), name="t-1", zero=True, extra=lambda sc: sc.flow([(x, 0) for x in init]))
        k("s_nop 7", "s_nop 3")
        for X in "BA":
            d = t[0]; Sx = self.Sb[(X, 0)]
            k(self.rowmax(Sx, d))
            for e in range(16): k(f"v_sub_f32 {self.negm[X][e]}, 0, {d}")
            for e in range(32): k(f"v_sub_f32 {Sx[e]}, {Sx[e]}, {d}")
        Ln1 = k.lab("n1")
        k(f"s_cmp_ge_u32 {self.spend}, 212", f"s_cbranch_scc1 {Ln1}", self.rp_issue()); k.label(Ln1)
        k(self.diag.stamp("attpro"))
        ws = srd["ws"]
        L0m, LdA, LdA7, LdB, Lp1, Lm1, Lp2 = [k.lab(x) for x in ("i0m", "drA", "drA7", "drB", "p1", "m1", "p2")]
        def pol(reg, val):
            lab = k.lab("np")
            return lambda sc: sc.fix(1, f"s_cmp_lg_u32 {reg}, {val}", f"s_cbranch_scc1 {lab}", self.poll_issue(self.dummy, self.tch, ws, self.sRP), lab + ":")
        def pre(k0, k1, lo=0):
            L = [x for ks in range(k0, k1) for x in self.w3ld(ks)]
            return lambda sc: sc.scatter(L, lo, sc.n, mingap=0)
        k(f"s_cmp_eq_u32 {self.sj}, 0", f"s_cbranch_scc1 {L0m}")
        it(0, sm="BA", qk="BA", nxt=Vg(0), name="t0")
        k(f"s_sub_u32 {self.sN}, {self.sj}, 1", f"s_cmp_eq_u32 {self.sN}, 0", f"s_cbranch_scc1 {Lm1}")
        k(".p2align 3"); k.label(Lp1)
        it(1, pv="BA", sm="BA", qk="BA", nxt=Vg(1), name="p1odd")
        it(0, pv="BA", sm="BA", qk="BA", nxt=Vg(0), name="p1even", extra=lambda sc: sc.fix(2, f"s_sub_u32 {self.sN}, {self.sN}, 1"))
        k(f"s_cmp_lg_u32 {self.sN}, 0", f"s_cbranch_scc1 {Lp1}")
        k.label(Lm1)
        it(1, pv="BA", sm="BA", qk="BA", mask="A", nxt=Vg(1), name="m1odd", extra=pol(self.sj, 7))
        it(0, pv="BA", sm="BA", qk="BA", mask="A", nxt=Vg(0), name="m1even")
        k(f"s_cmp_ge_u32 {self.spend}, 212", f"s_cbranch_scc1 {LdA}")
        self.rp_process('T')
        k.label(LdA)
        self.rp_setup_s(); k(self.rp_issue())
        k(f"s_cmp_eq_u32 {self.sj}, 7", f"s_cbranch_scc1 {LdA7}")
        it(1, pv="BA", sm="BA", qk="B", nxt=Vg(1), name="dAodd", vm=16)
        it(0, pv="BA", sm="B", qk="B", nxt=Vg(0), name="dAeven", vm=16)
        Lna = k.lab("na")
        k(f"s_cmp_ge_u32 {self.spend}, 128", f"s_cbranch_scc1 {Lna}")
        self.arrive(ws, self.sRP)
        k.label(Lna)
        self.epilogue('A')
        self.rp_process('S')
        k(f"s_lshl_b32 {self.sN}, {self.sj}, 1", f"s_sub_u32 {self.sN}, 13, {self.sN}")
        k(".p2align 3"); k.label(Lp2)
        it(1, pv="B", sm="B", qk="B", nxt=Vg(1), name="p2odd", extra=pol(self.sN, 1))
        it(0, pv="B", sm="B", qk="B", nxt=Vg(0), name="p2even", extra=lambda sc: sc.fix(2, f"s_sub_u32 {self.sN}, {self.sN}, 1"))
        k(f"s_cmp_lg_u32 {self.sN}, 0", f"s_cbranch_scc1 {Lp2}")
        self.poll_check(self.dummy, self.tch, ws, self.sRP, 128)
        it(1, pv="B", sm="B", qk="B", mask="B", nxt=Vg(1), name="m2odd", extra=pre(0, 2, 22))
        it(0, pv="B", sm="B", qk="B", mask="B", nxt=Vg(0), name="m2even", dma=False, vm=16, extra=pre(2, 5, 9))
        k.label(LdB)
        it(1, pv="B", sm="B", nxt=Vg(1), newslot_next=True, dma=False, name="dBodd", vm=12, extra=pre(5, 7, 9))
        it(0, pv="B", name="dBeven", extra=pre(7, 9))
        k(self.diag.stamp("attn"))
        k("s_nop 3")
        self.epilogue('B')
        def cold():
            k.label(L0m)
            it(0, sm="BA", qk="BA", mask="A", nxt=Vg(0), name="t0m")
            k(f"s_branch {LdA}")
            k.label(LdA7)
            self.poll_check(self.dummy, self.tch, ws, self.sRP, 128)
            it(1, pv="BA", sm="BA", qk="B", mask="B", nxt=Vg(1), name="dA7odd", vm=16, extra=pre(0, 2, 40))
            it(0, pv="BA", sm="B", qk="B", mask="B", nxt=Vg(0), name="dA7even", dma=False, vm=24, extra=pre(2, 5, 17))
            self.epilogue('A')
            self.rp_process('S')
            k(f"s_branch {LdB}")
            self.emit_rare()
        self.cold = cold

    def rp_setup(self):
        k, srd, lane, (t0, t1, t2), sw = self.k, self.srd, self.lane, self.t, self.sw
        self.rpv = R('v', 224, 8); self.rps = srd["wuk"]
        a, b = srd["wuv"], srd["wq"]
        self.rp_off, self.rp_d0, self.rp_dz, self.rp_e = a[0], a[1], a[2], a[3]
        stride, extra, u0, u1 = b[0], b[1], b[2], b[3]
        c = srd["ckv"]; self.sW3, self.sRP, self.spend = c[0], c[1], c[2]
        rps = self.rps; wsp = srd["wsp"]
        k(f"s_sub_u32 {wsp[0]}, {wsp[0]}, 4096", f"s_subb_u32 {wsp[1]}, {wsp[1]}, 0", f"s_mov_b32 {wsp[2]}, {SZ['wsp'] + 4096}",
          f"s_lshl_b32 {self.sW3}, {self.sj}, 19", f"s_lshl_b32 {u0}, {sw}, 17", f"s_add_u32 {self.sW3}, {self.sW3}, {u0}", f"s_add_u32 {self.sW3}, {self.sW3}, {WS_WO2}",
          f"s_mov_b32 {self.sRP}, {WS_FLAG + F_RP*128}")
        Li, Lo, Ls, Lt, Ld = [k.lab(x) for x in ("rin", "rout", "rsp", "rt", "rd")]
        def setsrd(n): return [f"s_mov_b32 {rps[0]}, {srd[n][0]}", f"s_mov_b32 {rps[1]}, {srd[n][1]}", f"s_mov_b32 {rps[2]}, {SZ[n] + (4096 if n == 'wsp' else 0)}"]
        k(f"s_sub_u32 {self.spend}, s2, 32", f"s_cmp_ge_u32 {self.spend}, 184", f"s_cbranch_scc1 {Lo}", f"s_cmp_ge_u32 {self.spend}, 128", f"s_cbranch_scc1 {Li}")
        k(setsrd("wo"), f"s_mov_b32 {stride}, 1024", f"s_mov_b32 {extra}, 0", f"s_mov_b32 {self.rp_e}, 11",
          f"s_lshl_b32 {self.rp_off}, {self.spend}, 15", f"s_lshl_b32 {u0}, {sw}, 8", f"s_add_u32 {self.rp_off}, {self.rp_off}, {u0}",
          f"s_lshl_b32 {self.rp_d0}, {self.spend}, 12", f"s_lshl_b32 {u0}, {sw}, 20", f"s_add_u32 {self.rp_d0}, {self.rp_d0}, {u0}", f"s_add_u32 {self.rp_d0}, {self.rp_d0}, {WS_WO2}",
          f"s_mov_b32 {self.rp_dz}, 524288", f"s_branch {Lt}")
        k.label(Li)
        k(setsrd("win"), f"s_mov_b32 {stride}, 3584", f"s_mov_b32 {extra}, 0", f"s_mov_b32 {self.rp_e}, 10",
          f"s_sub_u32 {u0}, {self.spend}, 128", f"s_lshl_b32 {u0}, {u0}, 2", f"s_add_u32 {u0}, {u0}, {sw}",
          f"s_mul_i32 {u1}, {u0}, 4682", f"s_lshr_b32 {u1}, {u1}, 16",
          f"s_mul_i32 {self.rp_dz}, {u1}, 14", f"s_sub_u32 {u0}, {u0}, {self.rp_dz}",
          f"s_mul_i32 {self.rp_off}, {u1}, {32*3584}", f"s_lshl_b32 {self.rp_dz}, {u0}, 8", f"s_add_u32 {self.rp_off}, {self.rp_off}, {self.rp_dz}",
          f"s_lshl_b32 {self.rp_d0}, {u0}, 17", f"s_lshl_b32 {u1}, {u1}, 12", f"s_add_u32 {self.rp_d0}, {self.rp_d0}, {u1}", f"s_add_u32 {self.rp_d0}, {self.rp_d0}, {WS_WIN2}",
          f"s_mov_b32 {self.rp_dz}, 65536", f"s_branch {Lt}")
        k.label(Lo)
        k(setsrd("wout"), f"s_mov_b32 {stride}, 1024", f"s_mov_b32 {self.rp_e}, 10",
          f"s_sub_u32 {u0}, {self.spend}, 184", f"s_lshl_b32 {self.rp_d0}, {u0}, 12", f"s_mul_i32 {u1}, {sw}, {2*114688}", f"s_add_u32 {self.rp_d0}, {self.rp_d0}, {u1}",
          f"s_add_u32 {self.rp_d0}, {self.rp_d0}, {WS_WOUT2}", f"s_mov_b32 {self.rp_dz}, 114688",
          f"s_mul_i32 {u1}, {u0}, 9363", f"s_lshr_b32 {u1}, {u1}, 16",
          f"s_mul_i32 {self.rp_off}, {u1}, 7", f"s_sub_u32 {u0}, {u0}, {self.rp_off}",
          f"s_mul_i32 {u1}, {u1}, 224", f"s_lshl_b32 {self.rp_off}, {u0}, 5",
          f"s_cmp_ge_u32 {u0}, 3", f"s_cselect_b32 {extra}, 16, 0", f"s_add_u32 {self.rp_off}, {self.rp_off}, {extra}",
          f"s_cmp_eq_u32 {u0}, 6", f"s_cselect_b32 {self.rp_off}, 96, {self.rp_off}", f"s_cselect_b32 {extra}, {96*1024}, 0",
          f"s_add_u32 {self.rp_off}, {self.rp_off}, {u1}", f"s_lshl_b32 {self.rp_off}, {self.rp_off}, 10",
          f"s_lshl_b32 {u0}, {sw}, 8", f"s_add_u32 {self.rp_off}, {self.rp_off}, {u0}")
        k.label(Lt)
        v = self.rpv
        k(f"v_lshrrev_b32 {t0}, 5, {lane}", f"v_lshlrev_b32 {t1}, 1, {t0}", f"v_xor_b32 {t1}, {t1}, {lane}", f"v_and_b32 {t1}, 3, {t1}", f"v_lshlrev_b32 {v[0]}, 4, {t1}",
          f"v_bfe_u32 {t1}, {lane}, 4, 1", f"v_lshl_add_u32 {v[0]}, {t1}, 6, {v[0]}",
          f"v_bfe_u32 {t1}, {lane}, 2, 2", f"v_lshl_add_u32 {t0}, {t0}, 2, {t1}", f"v_mul_u32_u24 {t0}, {stride}, {t0}", f"v_add_u32 {v[0]}, {v[0]}, {t0}",
          f"s_lshl_b32 {u0}, {stride}, 3", f"s_sub_u32 {u0}, {u0}, 1024", f"s_add_u32 {u1}, {u0}, {extra}",
          f"v_add_u32 {v[1]}, {u0}, {v[0]}", f"v_add_u32 {v[2]}, {u1}, {v[1]}", f"v_add_u32 {v[3]}, {u0}, {v[2]}")
        for i in range(4): k(f"v_add_u32 {v[4+i]}, 128, {v[i]}")
    def rp_setup_s(self):
        k, srd, lane, (t0, t1, t2), sw, v, rps = self.k, self.srd, self.lane, self.t, self.sw, self.rpv, self.rps
        u0, u1 = srd["wq"][2], srd["wq"][3]
        k(f"s_mov_b32 {rps[0]}, {srd['wsp'][0]}", f"s_mov_b32 {rps[1]}, {srd['wsp'][1]}", f"s_mov_b32 {rps[2]}, {SZ['wsp'] + 4096}",
          f"s_mov_b32 {self.rp_e}, 0", f"s_lshr_b32 {u0}, s2, 3", f"s_lshl_b32 {self.rp_off}, {u0}, 18",
          f"s_and_b32 {u0}, s2, 7", f"s_lshl_b32 {u0}, {u0}, 2", f"s_add_u32 {u0}, {u0}, {sw}", f"s_lshl_b32 {u0}, {u0}, 7", f"s_add_u32 {self.rp_off}, {self.rp_off}, {u0}",
          f"s_lshl_b32 {self.rp_d0}, s2, 2", f"s_add_u32 {self.rp_d0}, {self.rp_d0}, {sw}", f"s_lshl_b32 {self.rp_d0}, {self.rp_d0}, 13",
          f"s_add_u32 {self.rp_d0}, {self.rp_d0}, {WS_WSP2}", f"s_mov_b32 {self.rp_dz}, 4096",
          f"v_lshrrev_b32 {t1}, 4, {lane}", f"v_xor_b32 {t1}, {t1}, {lane}", f"v_and_b32 {t1}, 7, {t1}", f"v_lshlrev_b32 {t1}, 4, {t1}",
          f"v_bfe_u32 {t0}, {lane}, 3, 2", f"v_lshl_add_u32 {t1}, {t0}, 12, {t1}", f"v_lshrrev_b32 {t0}, 5, {lane}", f"v_lshl_add_u32 {t1}, {t0}, 15, {t1}",
          f"v_xor_b32 {t0}, 64, {t1}")
        for a_ in range(4):
            k(f"s_bfe_u32 {u0}, s2, 0x20001", f"s_add_u32 {u0}, {u0}, {a_}", f"s_and_b32 {u1}, {u0}, 1", f"s_lshl_b32 {u1}, {u1}, 14",
              f"s_bfe_u32 {u0}, {u0}, 0x10001", f"s_lshl_b32 {u0}, {u0}, 17", f"s_add_u32 {u0}, {u0}, {u1}",
              f"s_add_u32 {u1}, {u0}, {4096 - 1024*((2*a_) % 4)}", f"v_add_u32 {v[2*a_]}, {u1}, {t1}",
              f"s_add_u32 {u1}, {u0}, {4096 + 65536 - 1024*((2*a_ + 1) % 4)}", f"v_add_u32 {v[2*a_ + 1]}, {u1}, {t0}")
    def rp_issue(self):
        L = []
        for hf in range(2):
            L += [f"s_lshl_b32 m0, {self.sw}, 13"] if hf == 0 else ["s_add_u32 m0, m0, 4096"]
            L += [f"buffer_load_dwordx4 {self.rpv[4*hf + i]}, {self.rps}, {self.rp_off} offen offset:{1024*i} lds" for i in range(4)]
        return nopm0(L)
    def rp_process(self, kind):
        k, lane, wv, (t0, t1, t2), v = self.k, self.lane, self.wv, self.t, self.rpv
        if kind == 'T':
            stg = self.Q['A']
            k(f"v_lshrrev_b32 {t0}, 5, {lane}", f"v_lshlrev_b32 {v[0]}, {self.rp_e}, {t0}",
              f"v_bfe_u32 {t0}, {lane}, 4, 1", f"v_mul_u32_u24 {t0}, 544, {t0}", f"v_add_u32 {v[0]}, {v[0]}, {t0}",
              f"v_bfe_u32 {t0}, {lane}, 2, 2", f"v_lshl_add_u32 {v[0]}, {t0}, 6, {v[0]}",
              f"v_and_b32 {t0}, 3, {lane}", f"v_lshl_add_u32 {v[0]}, {t0}, 3, {v[0]}",
              f"v_lshl_add_u32 {v[0]}, {wv}, 13, {v[0]}", f"v_xor_b32 {v[1]}, 32, {v[0]}",
              f"s_sub_u32 {self.st[0]}, 21, {self.rp_e}", f"s_lshl_b32 {self.st[0]}, 1, {self.st[0]}",
              f"v_add_u32 {v[2]}, {self.st[0]}, {v[0]}", f"v_add_u32 {v[3]}, {self.st[0]}, {v[1]}")
            for z in range(2):
                for mt in range(4):
                    for t in range(2):
                        k(f"ds_read_b64_tr_b16 {stg.sub(16*z + 4*mt + 2*t, 2)}, {v[2*t + (mt & 1)]} offset:{z*4096 + (mt >> 1)*256}")
        else:
            stg = self.O['A']
            k(f"v_and_b32 {t0}, 15, {lane}", f"v_lshrrev_b32 {t1}, 1, {t0}", f"v_lshrrev_b32 {t2}, 4, {lane}",
              f"v_xor_b32 {t1}, {t1}, {t2}", f"v_lshlrev_b32 {t1}, 4, {t1}", f"v_lshl_add_u32 {t0}, {t0}, 7, {t1}",
              f"v_lshl_add_u32 {v[0]}, {wv}, 13, {t0}", f"v_xor_b32 {v[1]}, 64, {v[0]}", "s_waitcnt vmcnt(24)")
            for ks in range(2):
                for a_ in range(4): k(f"ds_read_b128 {stg.sub(16*ks + 4*a_, 4)}, {v[ks]} offset:{a_*2048}")
        k(f"s_add_u32 {self.st[0]}, {self.rp_d0}, {self.rp_dz}", "s_waitcnt lgkmcnt(0)")
        for z in range(2):
            for mt in range(4):
                k(f"buffer_store_dwordx4 {stg.sub(16*z + 4*mt, 4)}, {self.l16}, {self.srd['ws']}, {self.st[0] if z else self.rp_d0} offen offset:{1024*mt} sc1")
    WSLOT = [('a', 128), ('a', 144), ('v', 64), ('v', 80), ('v', 96), ('a', 0), ('a', 16), ('a', 32), ('a', 48),
             ('a', 160), ('a', 176), ('a', 192), ('a', 208), ('a', 224), ('a', 240)]
    def w3slot(self, ks):
        f, b = self.WSLOT[ks % 15]; return R(f, b, 16)
    def w3ld(self, ks):
        r = self.w3slot(ks)
        return [f"buffer_load_dwordx4 {r.sub(4*mt, 4)}, {self.l16}, {self.srd['ws']}, {self.sW3} offen offset:{1024*mt} sc1" for mt in range(4)] + \
               [f"s_add_u32 {self.sW3}, {self.sW3}, 4096"]

    def build(self):
        from tail import tail
        k = self.k
        self.entry(); self.front(); self.attention()
        tail(self)
        if self.diag.on: k("s_waitcnt vmcnt(0)", f"v_lshl_add_u32 v0, {self.wv}, 6, {self.lane}")
        self.diag.flush()
        k.label(k.name + "_end"); k("s_endpgm")
        self.cold()
        k.label(k.name + "_last"); k("s_endpgm")
        return k

HDR = open("sequential_preLN__compressed_kv_cla__mixer_gmlp__prompt.s.ref").read().split("; Override launch")[0]
def write_single(path, k):
    o = [HDR.rstrip("\n"), "; @launch grid=(256,1,1) block=(256,1,1) lds=163840", '.amdgcn_target "amdgcn-amd-amdhsa--gfx950"', ".text",
         k.text(), '.section .rodata,"a"', ".p2align 6", k.desc()]
    open(path, "w").write("\n".join(o))
def build(path, dg, **kw):
    k = Mega(dg, **kw).build()
    assert not check(k)
    write_single(path, k)
    if dg: json.dump([["mega", 0, k.diag.names, 256]], open(path[:-2] + ".json", "w"))
if __name__ == "__main__":
    build("../dev/mega_dg.s", True)
    build("../dev/mega_rare.s", True, thr=3.0)
    build("../dev/mega.s", False)
```
